```python
import torch

def _softmax(x, axis=-1):
    return torch.softmax(x, dim=axis)
def _gelu(x):
    return torch.nn.functional.gelu(x, approximate="tanh")
def _silu(x):
    return torch.nn.functional.silu(x)
def _sigmoid(x):
    return torch.sigmoid(x)
def _layernorm(x, axis=-1, eps=1e-5):
    m = x.mean(dim=axis, keepdim=True)
    v = x.var(dim=axis, keepdim=True, unbiased=False)
    return (x - m) / torch.sqrt(v + eps)
def _scatter_add(tgt, idx, src, axis=0):
    return tgt.clone().index_add_(axis, idx, src)
def _segment_sum(src, seg, n):
    out = torch.zeros((n,) + src.shape[1:], dtype=src.dtype)
    return out.index_add_(0, seg, src)
def _pad(x, pw):
    flat = tuple(v for pair in reversed(pw) for v in pair)
    return torch.nn.functional.pad(x, flat)

kernel_name = 'standalone__modern_conv_block_convnext_v2__vision'

def setup_inputs():

    _w = (lambda a: (lambda t: t.to(torch.bfloat16) if t.is_floating_point() else t)(torch.as_tensor(a)))
    H = W = 384
    C = 192
    K = 1
    return {
        "x": _w((lambda *s: torch.randn(*s, dtype=torch.bfloat16) * 0.05)(1, H, W, C)),
        "dw": _w((lambda *s: torch.randn(*s, dtype=torch.bfloat16) * 0.05)(K, K, C)),
        "w1": _w((lambda *s: torch.randn(*s, dtype=torch.bfloat16) * 0.05)(C, 4 * C)),
        "w2": _w((lambda *s: torch.randn(*s, dtype=torch.bfloat16) * 0.05)(4 * C, C)),
        "grn_gamma": _w((lambda *s: torch.randn(*s, dtype=torch.bfloat16) * 0.05)(4 * C)),
        "grn_beta": _w((lambda *s: torch.randn(*s, dtype=torch.bfloat16) * 0.05)(4 * C)),
    }

def reference(x, dw, w1, w2, grn_gamma, grn_beta):
    B, H, W, C = x.shape
    K = dw.shape[0]
    pad = K // 2
    xp = _pad(x, ((0,0),(pad,pad),(pad,pad),(0,0)))
    out = torch.zeros_like(x)
    for i in range(K):
        for j in range(K):
            out = out + xp[:, i:i+H, j:j+W, :] * dw[i, j][None, None, None, :]
    h = _layernorm(out, axis=-1)
    h = torch.einsum('bhwc,ce->bhwe', h, w1)
    h = _gelu(h)
    gx = torch.sqrt((h * h).sum(axis=(1, 2), keepdims=True) + 1e-6)
    nx = gx / (gx.mean(axis=-1, keepdims=True) + 1e-6)
    h = grn_gamma * (h * nx) + grn_beta + h
    h = torch.einsum('bhwe,ec->bhwc', h, w2)
    return x + h
```

```python
from mbl import *
from mbl import _check, _hip
name = "mb_kernel"
body = """
    s_load_dwordx2 s[4:5], s[0:1], 0
    s_waitcnt lgkmcnt(0)
    s_mov_b32 s8, s4
    s_mov_b32 s9, s5
    s_mov_b32 s10, 0x100000
    s_mov_b32 s11, 0x20000
    v_lshlrev_b32 v1, 2, v0
    v_add_u32 v2, 0x12340000, v0
    ds_write_b32 v1, v2
    v_mov_b32 v20, 0x40490fdb
    v_mov_b32 v30, 4092
    ds_write_b32 v30, v20
    s_waitcnt lgkmcnt(0)
    s_barrier
    v_mov_b32 v3, 0xdeadbeef
    ds_read_u16_d16_hi v3, v1
    v_mov_b32 v4, 0xdeadbeef
    ds_read_u16_d16 v4, v1 offset:2
    v_mov_b32 v5, 0xdeadbeef
    v_add_u32 v6, 4096, v1
    ds_read_u16_d16_hi v5, v6
    v_mov_b32 v7, 0xdeadbeef
    v_add_u32 v8, 0x1fff0, v1
    ds_read_b32 v7, v8
    v_mov_b32 v9, 0xc0490fdb
    v_mov_b32 v21, 1
    v_lshlrev_b32_sdwa v10, v21, v9 dst_sel:DWORD dst_unused:UNUSED_PAD src0_sel:DWORD src1_sel:WORD_1
    v_lshlrev_b32_sdwa v23, 1, v9 dst_sel:DWORD dst_unused:UNUSED_PAD src0_sel:DWORD src1_sel:WORD_1
    v_mov_b32 v11, 0x40404000
    v_mov_b32 v12, 0x40a00000   ; f32 5.0
    v_dot2_f32_bf16 v13, v11, v12, 0
    v_mov_b32 v27, 0x40a0
    v_dot2_f32_bf16 v14, v11, v27, 0
    v_mov_b32 v15, v0
    v_add_u32 v16, 100, v0
    s_nop 1
    v_permlane16_swap_b32 v15, v16
    v_mov_b32 v17, v0
    v_add_u32 v18, 100, v0
    s_nop 1
    v_permlane32_swap_b32 v17, v18
    v_mov_b32 v19, v1
    ds_read_u16_d16_hi v19, v19
    v_mov_b32 v24, 0x00010001
    v_mov_b32 v25, 0x3f800000
    v_dot2_f32_bf16 v26, v24, v25, 0
    s_waitcnt lgkmcnt(0)
    v_lshlrev_b32 v1, 6, v0
    buffer_store_dword v3, v1, s[8:11], 0 offen
    buffer_store_dword v4, v1, s[8:11], 0 offen offset:4
    buffer_store_dword v5, v1, s[8:11], 0 offen offset:8
    buffer_store_dword v7, v1, s[8:11], 0 offen offset:12
    buffer_store_dword v10, v1, s[8:11], 0 offen offset:16
    buffer_store_dword v13, v1, s[8:11], 0 offen offset:20
    buffer_store_dword v14, v1, s[8:11], 0 offen offset:24
    buffer_store_dword v15, v1, s[8:11], 0 offen offset:28
    buffer_store_dword v16, v1, s[8:11], 0 offen offset:32
    buffer_store_dword v17, v1, s[8:11], 0 offen offset:36
    buffer_store_dword v18, v1, s[8:11], 0 offen offset:40
    buffer_store_dword v19, v1, s[8:11], 0 offen offset:44
    buffer_store_dword v23, v1, s[8:11], 0 offen offset:48
    buffer_store_dword v26, v1, s[8:11], 0 offen offset:52
    s_waitcnt vmcnt(0)
"""
asm = HDR.format(g=1, b=64, lds=4096, name=name) + body + FTR.format(name=name, nv=64, acc=64)
co = build(asm, name, 9)
if os.path.exists("/dev/kfd"):
    out = DeviceBuffer(0x100000)
    k = AsmKernel(co, name)
    k.launch((1,1,1), (64,1,1), pack_ptr_kernargs([out.ptr]*9), shared_mem=4096); sync()
    a = out.to_numpy(np.uint32, (64, 16))
    names = ["d16hi", "d16lo", "oob d16hi", "oob b32", "sdwa", "dot2", "dot2 swap", "pl16 a", "pl16 b", "pl32 a", "pl32 b", "inplace", "sdwa imm", "dot2 denorm"]
    for i, n in enumerate(names):
        print(f"{n:12s}", " ".join(f"{x:08x}" if i not in (7,8,9,10) else f"{x:3d}" for x in a[[0, 1, 5, 16, 17, 32, 33, 48, 63], i]))
```

```python
import math, struct
from fw import *
NAME = "standalone__modern_conv_block_convnext_v2__vision"
NPX = 147456; C = 192; E = 768
NCU = 256; PXCU = 576
NS = 16; NR = 8
WS_H = 0
H_BYTES = (NPX // 16) * NS * 1024
WS_RHO = 0x0F000000
WS_LUT = 0x0F100000
LUT_N = 0xC0C0; LUT_BYTES = LUT_N * 2
WS_W1F = 0x0F200000
WS_W2F = 0x0F300000; WS_W1P = 0x0F300000 + 294912; W1P_BYTES = NR * 12288
WS_BIAS = 0x0F380000
WS_SQ = 0x0F400000; NREP = 16; SQ_BYTES = NREP * 3072
def f2u(x): return struct.unpack("<I", struct.pack("<f", x))[0]
def hx(x): return f"0x{f2u(x):08x}"
_a = 2.0 * math.sqrt(2.0 / math.pi) * math.log2(math.e)
KS = (_a * 0.044715) ** (1.0 / 3.0)
C0 = _a / KS
ARG = dict(x=0, dw=8, w1=16, w2=24, gamma=32, beta=40, out=48, dbg=56, ws=64)
def srd(d, base, off, nbytes):
    t = f"s_add_u32 s{d}, s{base}, {off}\ns_addc_u32 s{d+1}, s{base+1}, 0\n" if off else f"s_mov_b32 s{d}, s{base}\ns_mov_b32 s{d+1}, s{base+1}\n"
    return L(t + f"s_mov_b32 s{d+2}, {nbytes}\ns_mov_b32 s{d+3}, 0x20000")
def magic(d, maxx):
    for sh in range(8, 24):
        m = -(-(1 << sh) // d)
        if all((x * m) >> sh == x // d for x in range(maxx)): return m, sh
    raise ValueError
def sdiv(dst, src, d, maxx):
    m, sh = magic(d, maxx)
    return L(f"s_mul_i32 s{dst}, s{src}, {m}\ns_lshr_b32 s{dst}, s{dst}, {sh}")
def header(name): return f".globl {name}\n.p2align 8\n.type {name},@function\n{name}:\n"
def descr(name, nv, acc, ns=96):
    return f""".p2align 6
.amdhsa_kernel {name}
  .amdhsa_next_free_vgpr {nv}
  .amdhsa_next_free_sgpr {ns}
  .amdhsa_accum_offset {acc}
  .amdhsa_group_segment_fixed_size 0
  .amdhsa_kernarg_size 72
  .amdhsa_user_sgpr_count 2
  .amdhsa_user_sgpr_kernarg_segment_ptr 1
  .amdhsa_system_sgpr_workgroup_id_x 1
  .amdhsa_float_denorm_mode_32 3
.end_amdhsa_kernel
"""
def chunk_of(w, s): return 4 * w + s if s < 4 else 16 + 2 * w + (s - 4)

def code_srd(tag):
    return L(f"""
s_getpc_b64 s[80:81]
L{tag}_pc:
s_and_b32 s81, s81, 0xffff
s_mov_b32 s82, L_code_end-L{tag}_pc
s_mov_b32 s83, 0x20000
""")
```

```python
import re

REG = re.compile(r"^(-|\|)?([vas])(\d+)\|?$")
RNG = re.compile(r"^(-)?([vas])\[(\d+):(\d+)\]$")
TRANS = ("v_exp_f32", "v_rcp_f32", "v_rsq_f32", "v_sqrt_f32", "v_log_f32")

def regs_of(tok):
    tok = tok.strip()
    m = REG.match(tok)
    if m: return [(m.group(2), int(m.group(3)))]
    m = RNG.match(tok)
    if m: return [(m.group(2), i) for i in range(int(m.group(3)), int(m.group(4)) + 1)]
    if tok == "vcc": return [("s", 106), ("s", 107)]
    if tok == "exec": return [("s", 126), ("s", 127)]
    if tok == "m0": return [("s", 124)]
    return []

class I:
    __slots__ = ("text", "op", "kind", "dst", "src", "srcc", "tag", "need", "cost", "meta", "wide")
    def __init__(self, text, tag=None, need=None, meta=None):
        self.text = text.strip(); self.tag = tag; self.need = need or []; self.meta = meta
        t = self.text.split(";")[0].strip()
        parts = t.split(None, 1)
        op = parts[0]; self.op = op
        rest = parts[1] if len(parts) > 1 else ""
        toks = []
        for x in rest.split(","):
            x = x.strip()
            if x: toks.append(x)
        mods = ""
        if toks:
            last = toks[-1].split(None, 1)
            toks[-1] = last[0]
        clean = []
        stop = False
        for x in rest.split(","):
            x = x.strip()
            w = x.split()
            if not w: continue
            clean.append(w[0])
            if len(w) > 1: break
        toks = clean
        R = [regs_of(x) for x in toks]
        self.dst = set(); self.src = set(); self.srcc = set(); self.wide = False
        flat = lambda L: set(r for l in L for r in l)
        self.cost = 4
        if op.endswith(":") or op.startswith("."):
            self.kind = "label"; self.cost = 0
        elif op.startswith("v_mfma"):
            self.kind = "mfma32" if "32x32" in op else "mfma16"
            self.dst = set(R[0]); self.src = flat(R[1:3]); self.srcc = set(R[3]); self.src |= self.srcc
        elif op.startswith("v_permlane"):
            self.kind = "perm"; self.dst = flat(R[:2]); self.src = flat(R[:2])
        elif op.startswith("v_readfirstlane") or op.startswith("v_readlane"):
            self.kind = "rdlane"; self.dst = set(R[0]); self.src = flat(R[1:])
        elif op.startswith("v_"):
            base = op.replace("_e64", "").replace("_e32", "")
            self.kind = "trans" if base in TRANS else ("dpp" if op.endswith("_dpp") else "valu")
            if self.kind == "trans": self.cost = 8
            self.dst = set(R[0]); self.src = flat(R[1:])
            if op.startswith("v_fmac") or (op.endswith("_dpp") and "bank_mask:0xf" not in rest) or op.startswith("v_writelane"): self.src |= self.dst
            if op.startswith("v_add_co") or op.startswith("v_addc_co"): self.dst |= set(R[1])
            if op.startswith("v_cndmask") and len(R) < 4: self.src |= set(regs_of("vcc"))
        elif op.startswith("ds_read") or op.startswith("ds_bpermute"):
            self.kind = "lds"; self.dst = set(R[0]); self.src = flat(R[1:])
        elif op.startswith("ds_write") or op.startswith("ds_add"):
            self.kind = "lds"; self.src = flat(R)
        elif op.startswith("buffer_load"):
            if re.search(r"\blds\b", rest): self.kind = "vm"; self.src = flat(R) | {("s", 124)}; self.meta = self.meta or "dma"
            else: self.kind = "vm"; self.dst = set(R[0]); self.src = flat(R[1:])
        elif op.startswith("buffer_store") or op.startswith("buffer_atomic"):
            self.kind = "vm"; self.src = flat(R)
            if op.startswith("buffer_atomic") and re.search(r"\bsc0\b", rest): self.dst = set(R[0])
            if "x4" in op or "x3" in op: self.wide = True; self.srcc = set(R[0])
        elif op.startswith("buffer_") : self.kind = "vm"
        elif op.startswith("s_load") or op.startswith("s_memtime") or op.startswith("s_memrealtime"):
            self.kind = "smem"; self.dst = set(R[0]); self.src = flat(R[1:])
        elif op in ("s_waitcnt", "s_barrier", "s_nop", "s_setprio", "s_endpgm", "s_sleep") or op.startswith("s_cbranch") or op == "s_branch":
            self.kind = {"s_waitcnt": "wait", "s_nop": "nop", "s_barrier": "barrier"}.get(op, "salu")
        elif op.startswith("s_cmp"):
            self.kind = "salu"; self.src = flat(R)
        elif op.startswith("s_"):
            self.kind = "salu"; self.dst = set(R[0]); self.src = flat(R[1:])
            if "saveexec" in op: self.dst |= set(regs_of("exec")); self.src |= set(regs_of("exec"))
        else:
            raise ValueError("unknown op " + text)
    def states(self):
        if self.kind == "label": return 0
        if self.kind == "nop": return int(self.text.split()[1]) + 1
        return 1
    def isvalu(self): return self.kind in ("valu", "trans", "dpp", "perm", "rdlane")
    def __repr__(self): return self.text

def L(text, **kw):
    return [I(x, **kw) for x in text.strip().split("\n") if x.strip() and not x.strip().startswith(";")]

def parse_wait(ins):
    vm = re.search(r"vmcnt\((\d+)\)", ins.text); lg = re.search(r"lgkmcnt\((\d+)\)", ins.text)
    return (int(vm.group(1)) if vm else None, int(lg.group(1)) if lg else None)

class Prog:
    def __init__(self): self.segs = []; self.nohoist32 = False
    def lin(self, l): self.segs.append(["lin", list(l), 1])
    def loop(self, l, n=3): self.segs.append(["loop", list(l), n])
    def trace(self):
        for si, (k, l, n) in enumerate(self.segs):
            for it in range(min(n, 4)):
                for i, ins in enumerate(l): yield si, i, ins
    def add_waits(self):
        for rounds in range(10000):
            vmq = []; lgq = []
            fix = None
            for si, i, ins in self.trace():
                if ins.kind == "wait":
                    vm, lg = parse_wait(ins)
                    if vm is not None:
                        while len(vmq) > vm: vmq.pop(0)
                    if lg is not None:
                        if any(o.kind == "smem" for o in lgq):
                            if lg == 0: lgq = []
                        else:
                            while len(lgq) > lg: lgq.pop(0)
                    continue
                touch = ins.src | ins.dst
                nv = nl = None
                for q, name in ((vmq, "vm"), (lgq, "lg")):
                    idx = -1
                    for j, o in enumerate(q):
                        if o.dst & touch: idx = j
                    for nd in ins.need:
                        tg, skip = nd if isinstance(nd, tuple) else (nd, 0)
                        m_ = [j for j, o in enumerate(q) if o.tag == tg]
                        if len(m_) > skip: idx = max(idx, m_[len(m_) - 1 - skip])
                    if idx >= 0:
                        n = len(q) - 1 - idx
                        if name == "vm": nv = min(n, 63)
                        else: nl = 0 if any(o.kind == "smem" for o in q) else min(n, 15)
                if ins.kind == "vm" and len(vmq) >= 63: nv = 62 if nv is None else min(nv, 62)
                if ins.kind == "lds" and len(lgq) >= 15: nl = (0 if any(o.kind == "smem" for o in lgq) else 14) if nl is None else min(nl, 14)
                if nv is not None or nl is not None:
                    fix = (si, i, nv, nl); break
                if ins.kind == "vm": vmq.append(ins)
                elif ins.kind in ("lds", "smem"): lgq.append(ins)
            if fix is None: return
            si, i, nv, nl = fix
            l = self.segs[si][1]
            if i > 0 and l[i - 1].kind == "wait":
                ov, ol = parse_wait(l[i - 1])
                nv = ov if nv is None else (nv if ov is None else min(nv, ov))
                nl = ol if nl is None else (nl if ol is None else min(nl, ol))
                l.pop(i - 1); i -= 1
            t = "s_waitcnt" + (f" vmcnt({nv})" if nv is not None else "") + (f" lgkmcnt({nl})" if nl is not None else "")
            l.insert(i, I(t))
        raise RuntimeError("waits did not converge")
    def add_nops(self, verbose=False):
        total = 0
        for rounds in range(10000):
            hist = []
            pos = 0; fix = None
            for si, i, ins in self.trace():
                if ins.kind == "label": continue
                need = 0; why = None
                for (p, pp) in reversed(hist):
                    d = pos - pp - p.states()
                    if d >= 20: break
                    r = hazard(p, ins)
                    if r > d and r - d > need: need = r - d; why = p
                if need: fix = (si, i, need, why, ins); break
                hist.append((ins, pos)); pos += ins.states()
                if len(hist) > 64: hist.pop(0)
            if fix is None: return total
            si, i, need, why, ins = fix
            if verbose: print(f"  nop x{need} seg{si}: {why}  ->  {ins}")
            total += need
            while need > 0:
                k = min(need, 16); self.segs[si][1].insert(i, I(f"s_nop {k-1}")); need -= k
        raise RuntimeError
    def text(self):
        out = []
        for k, l, n in self.segs:
            for ins in l: out.append(ins.text if ins.kind == "label" else "    " + ins.text)
        return "\n".join(out) + "\n"
    def hoist_waits(self):
        for seg in self.segs:
            if seg[0] != "loop": continue
            l = seg[1]; i = 0
            while i < len(l):
                if l[i].kind == "wait" and i > 0 and not l[i - 1].kind.startswith("mfma"):
                    vm, lg = parse_wait(l[i]); j = i - 1; nv = nl = 0; ok = True
                    while j >= 0 and not l[j].kind.startswith("mfma"):
                        if l[j].kind in ("label", "barrier"): ok = False; break
                        if l[j].kind == "vm": nv += 1
                        if l[j].kind == "lds": nl += 1
                        j -= 1
                    if j < 0: ok = False
                    if ok and self.nohoist32 and l[j].kind == 'mfma32' and i + 1 < len(l) and l[i + 1].kind.startswith('mfma'): ok = False
                    if ok and vm is not None and vm - nv < 0: ok = False
                    if ok and lg is not None and lg - nl < 0: ok = False
                    if ok:
                        vm = None if vm is None else vm - nv; lg = None if lg is None else lg - nl
                        l.pop(i)
                        if l[j + 1].kind == "wait":
                            ov, ol = parse_wait(l[j + 1])
                            vm = ov if vm is None else (vm if ov is None else min(vm, ov))
                            lg = ol if lg is None else (lg if ol is None else min(lg, ol))
                            l.pop(j + 1); i -= 1
                        l.insert(j + 1, I("s_waitcnt" + (f" vmcnt({vm})" if vm is not None else "") + (f" lgkmcnt({lg})" if lg is not None else "")))
                i += 1
    def finalize(self, verbose=False, hoist=True):
        self.add_waits()
        if hoist: self.hoist_waits()
        n = self.add_nops(verbose); self.add_waits(); return n

def vec(S): return set(r for r in S if r[0] != "s")
def sca(S): return set(r for r in S if r[0] == "s")
def hazard(p, c):
    r = 0
    ismf = lambda x: x.kind.startswith("mfma")
    if p.isvalu():
        w = vec(p.dst)
        if ismf(c) and (w & c.src): r = max(r, 2)
        if c.kind == "dpp" and (w & c.src): r = max(r, 2)
        if c.kind == "perm" and (w & c.src): r = max(r, 2)
        if c.kind == "rdlane" and (w & c.src): r = max(r, 1)
        if p.kind == "trans" and c.isvalu() and c.kind != "trans" and (w & c.src): r = max(r, 1)
        if p.kind == "trans" and c.kind in ("vm", "lds") and (w & c.src): r = max(r, 1)
        s = sca(p.dst)
        if s:
            if c.kind == "vm" and (s & c.src): r = max(r, 5)
            if c.isvalu() and (s & c.src): r = max(r, 4 if c.kind == "rdlane" else 2)
            if c.kind in ("salu", "smem") and (s & c.src): r = max(r, 4)
            if ("s", 126) in s and (c.isvalu() or ismf(c)): r = max(r, 5)
    if ismf(p):
        big = p.kind == "mfma32"
        if ismf(c):
            if p.dst & (c.src - c.srcc): r = max(r, 12 if big else 8)
            elif p.dst & c.srcc:
                if not (p.dst == c.srcc and p.kind == c.kind): r = max(r, 10 if big else 6)
            elif p.dst & c.dst: r = max(r, 12 if big else 8)
        elif c.isvalu():
            if p.dst & (c.src | c.dst): r = max(r, 12 if big else 8)
            if p.srcc & c.dst: r = max(r, 7 if big else 3)
        elif c.kind in ("vm", "lds"):
            if p.dst & (c.src | c.dst): r = max(r, 12 if big else 8)
            if p.srcc & c.dst: r = max(r, 7 if big else 3)
    if p.kind == "vm" and p.wide and (p.srcc & c.dst): r = max(r, 2 if c.isvalu() else 1)
    if p.kind == "salu" and ("s", 124) in p.dst and c.kind == "vm" and c.meta == "dma": r = max(r, 1)
    if p.kind == "salu" and ("s", 126) in p.dst and c.kind == "dpp": r = max(r, 1)
    return r

def vr(b, n=1): return f"v{b}" if n == 1 else f"v[{b}:{b+n-1}]"
def ar(b, n=1): return f"a{b}" if n == 1 else f"a[{b}:{b+n-1}]"
def sr(b, n=1): return f"s{b}" if n == 1 else f"s[{b}:{b+n-1}]"

class Grp:
    def __init__(self, text): self.l = L(text); self.cost = 4 * len(self.l); self.meta = None; self.kind = "grp"
    def isvalu(self): return False

class Gaps:
    def __init__(self, mfmas, budget):
        self.m = mfmas; self.n = len(mfmas); self.budget = budget; self.items = []; self.last = {}; self.drop = ()
    def put(self, pos, ins, stream, dl=None, late=False):
        d = int(pos) + 1 if dl is None else (dl if late else min(dl, int(pos) + 1))
        assert pos >= self.last.get(stream, -1), ("stream order", stream, pos, self.last[stream], ins)
        self.last[stream] = pos
        if stream in self.drop and getattr(ins, 'kind', '') in ('vm', 'valu', 'trans', 'dpp', 'lds', 'barrier'): return
        if any(d.startswith('op:') and d[3:] in getattr(ins, 'text', '') for d in self.drop): return
        self.items.append((pos, len(self.items), ins, stream, d))
    def emit(self, report=False):
        items = sorted(self.items, key=lambda x: (x[0], x[1]))
        out = []; k = 0; carry = []; over = 0; hist = []
        ismem = lambda x: x.kind in ("lds", "vm")
        def cost(x):
            if x.kind == "lds" and x.op.startswith("ds_write"): return 20 if "128" in x.op else 12
            if x.kind == "vm": return 8
            return x.cost
        for g in range(self.n):
            out.append((g, self.m[g], None))
            while k < len(items) and items[k][0] < g + 1: carry.append(items[k]); k += 1
            bud = self.budget[g] if isinstance(self.budget, list) else self.budget
            b0 = bud
            last = g == self.n - 1
            must = set()
            for j in range(len(carry) - 1, -1, -1):
                it = carry[j]
                if last or it[4] <= g or any(carry[q][3] == it[3] for q in must): must.add(j)
            mustids = set(carry[j][1] for j in must)
            bud -= sum(cost(it[2]) for it in carry if it[1] in mustids)
            bud += 4 if any((not it[2].isvalu() and not ismem(it[2])) for it in carry if it[1] in mustids) else 0
            front = []; blocked = set(); freeslot = not any((not it[2].isvalu() and not ismem(it[2])) for it in carry if it[1] in mustids)
            j = 0
            while j < len(carry):
                it = carry[j]; x = it[2]
                if it[3] in blocked or x.isvalu(): blocked.add(it[3]); j += 1; continue
                if it[1] in mustids: front.append(carry.pop(j)); continue
                if not ismem(x) and freeslot and x.cost == 4: freeslot = False; front.append(carry.pop(j)); continue
                if cost(x) <= bud: bud -= cost(x); front.append(carry.pop(j)); continue
                blocked.add(it[3]); j += 1
            seen = set()
            for j, it in enumerate(front):
                if not ismem(it[2]) and it[3] not in seen: front.insert(0, front.pop(j)); break
                seen.add(it[3])
            out += [(g, it[2], it[3]) for it in front]
            blocked = set(); j = 0
            while j < len(carry):
                it = carry[j]; x = it[2]; c = cost(x)
                if it[1] in mustids:
                    if ismem(x): bud -= 8
                    out.append((g, x, it[3])); carry.pop(j)
                elif it[3] not in blocked and not ismem(x) and c <= bud:
                    out.append((g, x, it[3])); carry.pop(j); bud -= c
                else:
                    blocked.add(it[3]); j += 1
            if bud < 0: over -= bud
            hist.append(b0 - bud)
        if report: print(f"    gaps={self.n} total load={sum(hist)} overflow={over}; load per gap:", " ".join(map(str, hist[:100])))
        res = []
        for (g, x, st) in out:
            if x.kind == "grp": res += [(g, y, st) for y in x.l]
            else: res.append((g, x, st))
        return res
```

```python
from common import *
XN = 0; RAW = 32768; LUTO = 163840 - LUT_BYTES
VX = 176; VACC = (144, 160); VSQ = 78; VSQN = (142, 143); VPK = 60; VU = 36; VDW = 12
VG = [68, 69, 70, 71, 72, 73, 74, 75, 76, 77, 7, 0]
S1, S2, T0, T1 = 8, 9, 10, 11
def wfrag(s, ks):
    f = s * 12 + ks
    return ar(4 * f, 4) if f < 64 else vr(224 + 4 * (f - 64), 4)
SDWA = "dst_sel:DWORD dst_unused:UNUSED_PAD src0_sel:DWORD src1_sel:WORD_1"

def ln_items(cfg):
    l = []
    for i in range(3):
        l.append(I(f"ds_read_b128 {vr(VU+8*i+4,4)}, v3 offset:{128*i}", need=[("raw", 3)] if i == 0 else None))
    stats = []
    for i in range(3):
        b = VU + 8 * i
        for j in range(4):
            stats += L(f"v_lshlrev_b32 v{b+2*j}, 16, v{b+4+j}\nv_and_b32 v{b+2*j+1}, 0xffff0000, v{b+4+j}")
        for j in range(8): stats += L(f"v_mul_f32 v{b+j}, v{b+j}, v{VDW+8*i+j}")
        for j in range(8):
            if i == 0 and j == 0: stats += L(f"v_mul_f32 v{S2}, v{b}, v{b}")
            elif i == 0 and j == 1: stats += L(f"v_add_f32 v{S1}, v{b}, v{b+1}\nv_fmac_f32 v{S2}, v{b+1}, v{b+1}")
            else: stats += L(f"v_add_f32 v{S1}, v{S1}, v{b+j}\nv_fmac_f32 v{S2}, v{b+j}, v{b+j}")
        if i == 2:
            for k in range(3): stats.insert(len(stats) - 22 + 7 * k, I(f"buffer_load_dwordx4 v4, s[24:27], s40 offen offset:{1024*k} lds {cfg['xflag']}", tag="raw"))
    l += stats
    for m in ("quad_perm:[1,0,3,2]", "quad_perm:[2,3,0,1]", "row_half_mirror"):
        l += L(f"v_add_f32_dpp v{S1}, v{S1}, v{S1} {m} row_mask:0xf bank_mask:0xf\nv_add_f32_dpp v{S2}, v{S2}, v{S2} {m} row_mask:0xf bank_mask:0xf")
    l += L(f"""
v_mul_f32 v{S1}, {hx(1.0/192)}, v{S1}
v_mul_f32 v{S2}, {hx(1.0/192)}, v{S2}
v_fma_f32 v{S2}, -v{S1}, v{S1}, v{S2}
v_max_f32 v{S2}, 0, v{S2}
v_add_f32 v{S2}, {hx(1e-5)}, v{S2}
v_rsq_f32 v{T0}, v{S2}
v_mul_f32_e64 v{T1}, -v{S1}, v{T0}
buffer_store_dword v{T0}, v6, s[32:35], s42 offen {cfg['hflag']}
""")
    for i in range(3):
        b = VU + 8 * i
        for j in range(8): l += L(f"v_fma_f32 v{b+j}, v{b+j}, v{T0}, v{T1}")
        for j in range(4): l += L(f"v_cvt_pk_bf16_f32 v{b+j}, v{b+2*j}, v{b+2*j+1}")
        l.append(I(f"ds_write_b128 v2, {vr(b,4)} offset:{4224*i}", tag="xnw"))
    return l

def k1(cfg):
    name = "pass1_kernel"
    P = Prog()
    SG = LUTO; LR = VSQ
    l = L(f"""
s_cmp_ge_u32 s2, {NCU}
s_cbranch_scc1 L1_end
s_load_dwordx8 s[8:15], s[0:1], 0
s_load_dwordx4 s[56:59], s[0:1], 56
v_lshrrev_b32 v7, 6, v0
v_lshlrev_b32 v{VPK}, 3, v0
v_lshlrev_b32 v{VPK+4}, 4, v0
v_and_b32 v0, 63, v0
v_readfirstlane_b32 s20, v7
""") + code_srd(1) + L(f"""
v_lshlrev_b32 v{VX+3}, 7, v0
s_sub_u32 s84, s20, 2
s_lshl_b32 s84, s84, 13
buffer_load_dword v224, v{VX+3}, s[80:83], s84 offen
s_mul_i32 s3, s2, {PXCU*384}
s_mul_i32 s4, s2, {36*NS*1024}
s_mul_i32 s5, s2, {PXCU*4}
s_add_u32 s5, s5, {WS_RHO}
s_mul_i32 s21, s20, 3072
v_lshl_add_u32 v4, v0, 4, s21
v_lshrrev_b32 v8, 4, v0
v_bfe_u32 v9, v0, 2, 2
v_and_b32 v10, 3, v0
v_lshlrev_b32 v10, 4, v10
v_xor_b32 v11, v8, v9
v_lshl_add_u32 v1, v11, 6, v10
v_mul_u32_u24 v11, 1536, v8
v_add_u32 v1, v1, v11
v_lshl_add_u32 v1, v7, 8, v1
v_xor_b32 v11, v8, v9
v_and_b32 v11, 1, v11
v_lshl_add_u32 v2, v11, 6, v10
v_lshrrev_b32 v11, 3, v0
v_mul_u32_u24 v11, 1536, v11
v_add_u32 v2, v2, v11
v_lshl_add_u32 v2, v7, 7, v2
v_add_u32 v2, 1024, v2
s_mov_b32 s54, 1
s_and_b32 s55, s2, {NREP-1}
s_waitcnt lgkmcnt(0)
s_mov_b32 s16, s58
s_mov_b32 s17, s59
s_mov_b32 s58, 256
s_mov_b32 s59, 0x20000
s_add_u32 s24, s8, s3
s_addc_u32 s25, s9, 0
s_mov_b32 s26, {PXCU*384}
s_mov_b32 s27, 0x20000
s_add_u32 m0, s21, {RAW}
s_mov_b32 s40, 0
""")
    raw = lambda: [I(f"buffer_load_dwordx4 v4, s[24:27], s40 offen offset:{1024*k} lds {cfg['xflag']}", tag="raw") for k in range(3)]
    if cfg.get("st1"): l += L(".set STAMP0, 0")
    l += srd(44, 12, 0, C * E * 2) + L(f"""
s_lshr_b32 s6, s2, 3
s_lshl_b32 s6, s6, 1
s_add_u32 s6, s6, s20
""") + sdiv(7, 6, 36, 128) + L(f"""
s_mul_i32 s7, s7, 36
s_sub_u32 s6, s6, s7
s_lshl_b32 s65, s6, 13
s_cmp_lt_u32 s20, 2
s_cselect_b32 s6, s65, 0x100000
buffer_load_dword v225, v{VX+3}, s[44:47], s6 offen
s_lshl_b32 s6, s2, 6
s_add_u32 s6, s6, s20
s_cmp_lt_u32 s6, {NREP*64}
s_cselect_b32 s7, 0x3f, -1
s_and_b32 s6, s6, s7
s_cmp_eq_u32 s6, 0
s_cselect_b32 s66, 0, 0x1000
s_lshl_b32 s6, s55, 2
s_add_u32 s6, s6, s66
v_lshlrev_b32 v11, 20, v0
v_mov_b32 v{VX+2}, 1
buffer_atomic_add v{VX+2}, v11, s[56:59], s6 offen sc0
""")
    l += raw()
    l += L(f"s_mul_i32 s52, s20, 24576\ns_add_u32 s52, s52, {SG}\ns_mov_b32 s22, 0")
    def wdma(ks):
        t = []
        for i in range(6):
            t += L(f"s_add_u32 m0, s52, {(ks%4)*6144+1024*i}\ns_mov_b32 s22, {ks*24576+(6144*i if i < 4 else 12288*(i-4))}")
            t.append(I(f"buffer_load_dwordx4 v{1 if i < 4 else 2}, s[44:47], s22 offen lds", tag=f"wk{ks}"))
        return t
    if cfg.get("st1"): l += L(".set STAMP1, 0")
    for ks in range(4): l += wdma(ks)
    if cfg.get("st1"): l += L(".set STAMP2, 0")
    l += L(f"s_add_u32 m0, s21, {RAW+16384}\ns_mov_b32 s40, 12288") + raw()
    l += srd(36, 10, 0, C * 2) + L(f"""
v_and_b32 v3, 7, v0
v_lshlrev_b32 v3, 4, v3
""")
    for i in range(3): l += L(f"buffer_load_dwordx4 {vr(VDW+8*i+4,4)}, v3, s[36:39], 0 offen offset:{128*i}")
    if cfg.get("st1"): l += L(".set STAMP3, 0")
    TA = VG[:6]
    l += L(f"""
v_lshrrev_b32 v11, 5, v0
v_lshl_add_u32 v11, v11, 3, v9
v_and_b32 v8, 1, v8
v_lshlrev_b32 v8, 5, v8
v_lshrrev_b32 v10, 1, v10
v_add_u32 v8, v8, v10
v_add_u32 v8, s52, v8
v_lshl_add_u32 v{TA[0]}, v11, 8, v8
v_lshl_add_u32 v{TA[4]}, v11, 7, v8
v_add_u32 v{TA[4]}, 4096, v{TA[4]}
v_lshrrev_b32 v11, 1, v9
v_xor_b32 v10, 1, v11
v_lshl_add_u32 v{TA[5]}, v10, 6, v{TA[4]}
v_lshl_add_u32 v{TA[4]}, v11, 6, v{TA[4]}
""")
    for sl in (3, 2, 1, 0): l += L(f"v_xor_b32 v11, {sl}, v9\nv_lshl_add_u32 v{TA[sl]}, v11, 6, v{TA[0]}")
    l += L(f"""
v_add_u32 v{VPK+5}, 1, v{VPK}
v_lshl_or_b32 v{VPK}, v{VPK+5}, 16, v{VPK}
v_add_u32 v{VPK+1}, 0x20002, v{VPK}
v_add_u32 v{VPK+2}, 0x40004, v{VPK}
v_add_u32 v{VPK+3}, 0x60006, v{VPK}
v_mov_b32 v{VPK+5}, 0x8000
s_mov_b32 s60, {hx(KS)}
s_mov_b32 s61, {hx(KS)}
s_mov_b32 s62, {hx(C0)}
s_mov_b32 s63, {hx(C0)}
s_mov_b32 s64, 0xffff0000
""")
    l_keep = l; l = []
    for it in range(25):
        full = it in (0, 7, 8, 16, 23, 24)
        add = (it * 0x08000800 - (0x00800080 if (not full and it not in range(9, 16)) else 0)) & 0xffffffff
        for k in range(4): l += L(f"v_add_u32 v{LR+4*it+k}, {add}, v{VPK+k}")
        if full:
            Y = VU; Zz = VU + 8
            for k in range(4): l += L(f"v_lshl_or_b32 v{Y+2*k}, v{LR+4*it+k}, 16, v{VPK+5}\nv_and_or_b32 v{Y+2*k+1}, v{LR+4*it+k}, s64, v{VPK+5}")
            for k in range(4): l += L(f"v_pk_mul_f32 {vr(Zz+8+2*k,2)}, {vr(Y+2*k,2)}, s[60:61]")
            for k in range(4): l += L(f"v_pk_fma_f32 {vr(Zz+2*k,2)}, {vr(Zz+8+2*k,2)}, {vr(Zz+8+2*k,2)}, s[62:63]")
            for k in range(4): l += L(f"v_pk_mul_f32 {vr(Zz+2*k,2)}, {vr(Zz+2*k,2)}, {vr(Zz+8+2*k,2)}")
            for k in range(8): l += L(f"v_exp_f32_e64 v{Zz+k}, -v{Zz+k}")
            for k in range(4): l += L(f"v_pk_add_f32 {vr(Zz+2*k,2)}, {vr(Zz+2*k,2)}, 1.0 op_sel_hi:[1,0]")
            for k in range(8): l += L(f"v_rcp_f32 v{Zz+k}, v{Zz+k}")
            for k in range(4): l += L(f"v_pk_mul_f32 {vr(Y+2*k,2)}, {vr(Y+2*k,2)}, {vr(Zz+2*k,2)}")
            for k in range(4): l += L(f"v_cvt_pk_bf16_f32 v{LR+4*it+k}, v{Y+2*k}, v{Y+2*k+1}")
    lut = l; l = l_keep
    w1a, w1b = VPK + 6, VPK + 7
    l += L(f"""
v_mov_b32 v{w1a}, v1
v_mov_b32 v{w1b}, v2
s_add_u32 s28, s16, s4
s_addc_u32 s29, s17, 0
s_mov_b32 s30, {36*NS*1024}
s_mov_b32 s31, 0x20000
s_add_u32 s32, s16, s5
s_addc_u32 s33, s17, 0
s_mov_b32 s34, {PXCU*4}
s_mov_b32 s35, 0x20000
s_mov_b32 s41, 0
s_mov_b32 s42, 0
v_and_b32 v8, 7, v0
v_and_b32 v11, 31, v0
v_lshrrev_b32 v9, 5, v0
v_mul_u32_u24 v1, 528, v9
v_lshl_add_u32 v1, v11, 4, v1
v_lshrrev_b32 v5, 4, v11
v_lshlrev_b32 v5, 14, v5
v_lshl_add_u32 v5, v9, 8, v5
v_and_b32 v11, 15, v0
v_lshl_add_u32 v5, v11, 4, v5
v_lshl_add_u32 v5, v7, 12, v5
v_lshrrev_b32 v9, 3, v0
v_lshl_add_u32 v11, v7, 3, v9
v_mul_u32_u24 v2, 528, v8
v_lshl_add_u32 v2, v11, 4, v2
v_mul_u32_u24 v3, 384, v11
v_lshl_add_u32 v3, v8, 4, v3
v_add_u32 v3, {RAW}, v3
v_lshlrev_b32 v6, 2, v11
v_lshl_add_u32 v6, v8, 28, v6
""")
    def trreads(ks):
        t = []
        for sl in range(6):
            f = sl * 12 + ks
            for hf in range(2):
                dst = ar(4 * f + 2 * hf, 2) if f < 64 else vr(224 + 4 * (f - 64) + 2 * hf, 2)
                t.append(I(f"ds_read_b64_tr_b16 {dst}, v{TA[sl]} offset:{(ks%4)*6144+hf*(1024 if sl < 4 else 512)}", tag=f"tr{ks}", need=[f"wk{ks}"] if not t else None))
        return t
    ln0 = ln_items(cfg)
    pre = []
    for i in range(3):
        for j in range(4): pre += L(f"v_lshlrev_b32 v{VDW+8*i+2*j}, 16, v{VDW+8*i+4+j}\nv_and_b32 v{VDW+8*i+2*j+1}, 0xffff0000, v{VDW+8*i+4+j}")
    pre += L(f"s_mov_b32 s40, 24576")
    fill = ln0[:3] + pre + ln0[3:]
    for x in fill:
        if x.meta == "dma": fill.insert(fill.index(x), I(f"s_add_u32 m0, s21, {RAW}")); break
    dm = [x for x in fill if x.meta == "dma"]; i0 = fill.index(dm[0])
    for x in dm[1:]: fill.remove(x)
    fill[i0 + 1:i0 + 1] = dm[1:]
    n0 = int(len(lut) * cfg.get("lut0", 0.5))
    l += lut[:n0]; fill = lut[n0:] + fill
    per = -(-len(fill) // 11)
    if not cfg.get("st1"): l += L(".set STAMP0, 0")
    for ks in range(12):
        l += trreads(ks)
        if cfg.get("st1"): continue_ = 1
        elif ks == 0: l += L(".set STAMP1, 0")
        elif ks == 4: l += L(".set STAMP2, 0")
        elif ks == 11: l += L(".set STAMP3, 0")
        if ks + 4 < 12:
            d = wdma(ks + 4)
            for x in d:
                if x.kind == "vm": x.text = x.text.replace("dwordx4 v1,", f"dwordx4 v{w1a},").replace("dwordx4 v2,", f"dwordx4 v{w1b},"); x.__init__(x.text, tag=x.tag)
            d[2].need = [f"tr{ks}"]
            l += d
        if ks == 1:
            l += srd(36, 16, WS_SQ, SQ_BYTES) + srd(48, 16, WS_BIAS, 768) + L(f"""
v_readfirstlane_b32 s54, v{VX+2}
v_mov_b32 v252, 0
v_mov_b32 v253, 0
v_mov_b32 v254, 0
v_mov_b32 v255, 0
v_lshlrev_b32 v{VX+2}, 4, v0
s_or_b32 s54, s54, s66
s_mul_i32 s53, s55, 3072
buffer_store_dwordx4 v[252:255], v{VX+2}, s[48:51], s66 offen
s_cmp_lg_u32 s54, 0
s_cbranch_scc1 L1_nozero
buffer_store_dwordx4 v[252:255], v{VX+2}, s[36:39], s53 offen sc1
buffer_store_dwordx4 v[252:255], v{VX+2}, s[36:39], s53 offen offset:1024 sc1
buffer_store_dwordx4 v[252:255], v{VX+2}, s[36:39], s53 offen offset:2048 sc1
L1_nozero:
""")
        if ks < 11:
            k = per
            while k < len(fill) and (fill[k].meta == "dma" or fill[k - 1].text.startswith("s_add_u32 m0") or fill[k - 1].op.startswith("s_cmp")): k += 1
            l += fill[:k]; fill = fill[k:]
    assert not fill
    l += L(f"v_add_u32 v{VPK+4}, {LUTO}, v{VPK+4}\nv_add_u32 v{VPK+5}, 0x10000, v{VPK+4}\ns_waitcnt lgkmcnt(0)\ns_barrier")
    for it in range(25): l += L(f"ds_write_b128 v{VPK+4+(it>>4)}, {vr(LR+4*it,4)} offset:{(it&15)*4096}")
    for r in list(range(VSQ, VSQ + 66)) + list(range(VACC[1], VACC[1] + 16)) + VG[:11]: l += L(f"v_mov_b32 v{r}, 0")
    l += srd(48, 14, 0, C * E * 2) + L(f"""
s_lshl_b32 s6, s55, 2
s_add_u32 s6, s6, 64
s_cmp_eq_u32 s54, 0
s_cselect_b32 s7, s6, 0x1000
v_mov_b32 v8, 1
v_mov_b32 v0, 0
buffer_store_dword v8, v0, s[56:59], s7 offen sc1
buffer_load_dword v{VPK}, v{VX+3}, s[48:51], s65 offen
s_add_u32 s84, s84, 32768
buffer_load_dword v{VPK+1}, v{VX+3}, s[80:83], s84 offen
s_mov_b32 s40, 36864
s_add_u32 m0, s21, {RAW+16384}
s_mov_b32 s42, 128
v_xor_b32 v2, 16384, v2
v_xor_b32 v3, 16384, v3
s_waitcnt lgkmcnt(0)
s_barrier
""")
    for ks in range(12): l += L(f"ds_read_b128 {vr(VX+4*ks,4)}, v1 offset:{1056*ks}")
    l += L("v_xor_b32 v1, 16384, v1\ns_waitcnt lgkmcnt(0)")
    P.lin(l)
    mf = []
    for s in range(6):
        a = vr(VACC[s % 2], 16)
        for ks in range(12):
            w, x = wfrag(s, ks), vr(VX + 4 * ks, 4)
            o = (w, x) if s < 4 else (x, w)
            mf.append(I(f"v_mfma_f32_32x32x16_bf16 {a}, {o[0]}, {o[1]}, {'0' if ks == 0 else a}"))
    G = Gaps(mf, cfg.get('bud1', 30)); G.drop = cfg.get('drop1', ())
    LAG = cfg.get("lag", 4); FS = cfg.get("fs", 0.45)
    for s in range(6):
        pc = (s - 1) % 6; acc = VACC[pc % 2]
        wrap = "w" if pc == 5 else ""
        rg = [2 + e * 10 // 16 for e in range(16)]
        ev = []
        for e in range(16):
            ev.append((12 * s + rg[e] - 1 + 0.3, 0, e)); ev.append((12 * s + rg[e], 1, e))
        for pos, kind, e in sorted(ev):
            g = VG[(16 * pc + e) % 12]
            if kind == 0: G.put(pos, I(f"v_lshlrev_b32_sdwa v{acc+e}, 1, v{acc+e} {SDWA}", meta=wrap), "s1", int(pos))
            else: G.put(pos, I(f"ds_read_u16_d16_hi v{g}, v{acc+e} offset:{LUTO}", tag=f"g{pc}_{e}", meta=wrap), "s1", int(pos))
        for e in range(3, 16, 4):
            q = 12 * s + rg[e] + LAG + 0.05
            st = "s2"; wr = wrap
            if q >= 72: q -= 72; st = "s2w"; wr = "w"
            for k, ee in enumerate(range(e - 3, e + 1)):
                gg = VG[(16 * pc + ee) % 12]
                sq = VSQ + 16 * pc + ee if pc < 4 else VSQN[pc - 4]
                G.put(q, I(f"v_fmac_f32 v{sq}, v{gg}, v{gg}", need=[f"g{pc}_{e}"] if k == 0 else None, meta=wr), st)
                if pc < 4 and k % 2 == 1:
                    G.put(q, I(f"v_cvt_pk_bf16_f32 v{VPK+ee//2}, v{VG[(16*pc+ee-1)%12]}, v{gg}"), st)
                if k == 1: q += FS
            if pc < 4 and e % 8 == 7:
                G.put(int(q) + 2, I(f"buffer_store_dwordx4 {vr(VPK+4*(e//8),4)}, v5, s[28:31], s41 offen offset:{1024*pc+512*(e//8)} {cfg['hflag']}"), "st")
    ln = ln_items(cfg)
    for i in range(3): G.put((0, 1, 1)[i], ln[i], "ln")
    rest = ln[3:]
    for k, ins in enumerate(rest): G.put(4 + k * (56.0 - 4) / len(rest), ins, "ln")
    G.put(57, I("v_xor_b32 v2, 16384, v2"), "ln"); G.put(57, I("v_xor_b32 v3, 16384, v3"), "ln")
    G.put(59.0, I("s_barrier", need=["xnw"]), "ln")
    for ks in range(12): G.put(60 + ks, I(f"ds_read_b128 {vr(VX+4*ks,4)}, v1 offset:{1056*ks}"), "ln")
    G.put(71.5, I("v_xor_b32 v1, 16384, v1"), "ln")
    for k, t in enumerate(["s_add_u32 s40, s40, 12288", "s_xor_b32 m0, m0, 16384", "s_add_u32 s42, s42, 128"]): G.put(61.5 + 2 * k, I(t), "sa")
    G.put(70, I("s_add_u32 s41, s41, 32768"), "st", 70)
    G.put(71, I(f"s_cmp_lg_u32 s41, {18*32768}"), "st")
    em = G.emit(report=True)
    body = L(".p2align 6\nL1_loop:") + [x[1] for x in em] + L("s_cbranch_scc1 L1_loop")
    P.loop(body, 18)
    l = L(f"""
v_mov_b32 v3, 0
buffer_load_dword v6, v3, s[56:59], s6 offen sc1
""")
    l += [I(x[1].text, tag=x[1].tag, need=x[1].need) for x in em if x[1].meta == "w"]
    l += L(f"""
s_mov_b32 s3, s53
s_lshl_b32 s4, s20, 9
s_add_u32 s4, s4, s3
s_lshl_b32 s5, s20, 8
s_add_u32 s5, s5, s3
s_add_u32 s5, s5, 2048
v_mbcnt_lo_u32_b32 v1, -1, 0
v_mbcnt_hi_u32_b32 v1, -1, v1
v_lshlrev_b32 v2, 2, v1
v_permlane32_swap_b32 v{VSQN[0]}, v{VSQN[1]}
v_add_f32 v{VSQN[0]}, v{VSQN[0]}, v{VSQN[1]}
v_bfe_u32 v3, v1, 2, 1
v_lshlrev_b32 v3, 5, v3
v_bfe_u32 v4, v1, 5, 1
v_lshl_add_u32 v3, v4, 4, v3
v_bfe_u32 v4, v1, 3, 1
v_lshl_add_u32 v3, v4, 3, v3
v_bfe_u32 v4, v1, 4, 1
v_lshl_add_u32 v3, v4, 2, v3
v_and_b32 v4, 3, v1
v_lshl_add_u32 v3, v4, 28, v3
""")
    R = lambda s, r: VSQ + 16 * s + r
    for s in range(4):
        for r in range(0, 16, 2): l += L(f"v_permlane16_swap_b32 v{R(s,r)}, v{R(s,r+1)}")
        for r in range(0, 16, 2): l += L(f"v_add_f32 v{R(s,r)}, v{R(s,r)}, v{R(s,r+1)}")
    for s in range(4):
        for r in range(0, 16, 4): l += L(f"v_add_f32_dpp v{R(s,r)}, v{R(s,r)}, v{R(s,r)} row_ror:8 row_mask:0xf bank_mask:0x3")
        for r in range(0, 16, 4): l += L(f"v_add_f32_dpp v{R(s,r)}, v{R(s,r+2)}, v{R(s,r+2)} row_ror:8 row_mask:0xf bank_mask:0xc")
    for s in range(4):
        for r in (0, 8): l += L(f"v_add_f32_dpp v{R(s,r)}, v{R(s,r)}, v{R(s,r)} row_half_mirror row_mask:0xf bank_mask:0x5")
    for s in range(4):
        for r in (0, 8): l += L(f"v_add_f32_dpp v{R(s,r)}, v{R(s,r+4)}, v{R(s,r+4)} row_half_mirror row_mask:0xf bank_mask:0xa")
    for m in ("quad_perm:[1,0,3,2]", "quad_perm:[2,3,0,1]"):
        for s in range(4):
            for r in (0, 8): l += L(f"v_add_f32_dpp v{R(s,r)}, v{R(s,r)}, v{R(s,r)} {m} row_mask:0xf bank_mask:0xf")
    l += L(f"""
v_readfirstlane_b32 s7, v6
s_cmp_lg_u32 s7, 0
s_cbranch_scc1 L1_go
v_lshlrev_b32 v5, 20, v1
v_mov_b32 v6, 1
s_sub_u32 s7, s6, 64
buffer_atomic_add v6, v5, s[56:59], s7 offen sc0
v_mov_b32 v8, 0
v_mov_b32 v9, 0
v_mov_b32 v10, 0
v_mov_b32 v11, 0
v_lshlrev_b32 v4, 4, v1
v_mov_b32 v5, 0
s_waitcnt vmcnt(0)
v_readfirstlane_b32 s7, v6
s_cmp_lg_u32 s7, 0
s_cbranch_scc1 L1_poll
buffer_store_dwordx4 v[8:11], v4, s[36:39], s53 offen sc1
buffer_store_dwordx4 v[8:11], v4, s[36:39], s53 offen offset:1024 sc1
buffer_store_dwordx4 v[8:11], v4, s[36:39], s53 offen offset:2048 sc1
v_mov_b32 v6, 1
s_waitcnt vmcnt(0)
buffer_store_dword v6, v5, s[56:59], s6 offen sc1
s_branch L1_go
L1_poll:
buffer_load_dword v6, v5, s[56:59], s6 offen sc1
s_waitcnt vmcnt(0)
v_readfirstlane_b32 s7, v6
s_cmp_lg_u32 s7, 0
s_cbranch_scc1 L1_go
s_sleep 8
s_branch L1_poll
L1_go:
buffer_atomic_add_f32 v{VSQN[0]}, v2, s[36:39], s5 offen
""")
    for s in range(4):
        for r in (0, 8): l += L(f"buffer_atomic_add_f32 v{R(s,r)}, v3, s[36:39], s4 offen offset:{128*s+8*r}")
    l += L("L1_end:\ns_endpgm")
    P.lin(l)
    n = P.finalize(cfg.get("verbose"))
    print("  k1 nops:", n)
    return name, header(name) + P.text(), descr(name, 512, 256), f"; @launch kernel={name} grid=({NCU},1,1) block=(256,1,1) lds=163840"
```

```python
from common import *
def k2():
    name = "mid_kernel"
    P = Prog()
    P.lin(L(f"""
s_cmp_ge_u32 s2, {24+NR}
s_cbranch_scc1 L2_end
s_load_dwordx8 s[4:11], s[0:1], 8
s_load_dwordx2 s[12:13], s[0:1], 40
s_load_dwordx2 s[16:17], s[0:1], 64
v_lshrrev_b32 v1, 6, v0
v_and_b32 v2, 63, v0
v_readfirstlane_b32 s20, v1
s_getpc_b64 s[80:81]
s_and_b32 s81, s81, 0xffff
s_mov_b32 s82, 4096
s_mov_b32 s83, 0x20000
v_lshlrev_b32 v60, 7, v2
buffer_load_dword v61, v60, s[80:83], 0 offen
s_cmp_ge_u32 s2, 24
s_waitcnt lgkmcnt(0)
s_cbranch_scc1 L2_w1p
"""))
    P.finalize(); txt = header(name) + P.text()
    P = Prog()
    l = srd(28, 8, 0, C * E * 2) + sdiv(21, 20, 3, 12) + L(f"""
s_mul_i32 s22, s21, 3
s_sub_u32 s22, s20, s22
s_mul_i32 s23, s21, 96
s_lshl_b32 s14, s22, 5
s_add_u32 s23, s23, s14
s_mul_i32 s14, s2, {32*384}
s_add_u32 s14, s14, s23
s_add_u32 s15, s14, {8*384}
v_and_b32 v7, 15, v2
v_lshrrev_b32 v9, 5, v2
v_lshlrev_b32 v9, 4, v9
v_bfe_u32 v10, v2, 4, 1
v_lshl_add_u32 v9, v10, 2, v9
v_mul_u32_u24 v10, 384, v9
v_lshl_add_u32 v8, v7, 1, v10
""")
    for i in range(8): l += L(f"buffer_load_short_d16_hi v{40+i}, v8, s[28:31], s{14 if i < 4 else 15} offen offset:{384*(i%4)}")
    l += srd(24, 16, WS_SQ, SQ_BYTES) + L("v_lshlrev_b32 v3, 2, v0")
    for r in range(NREP): l += L(f"s_mov_b32 s3, {3072*r}\nbuffer_load_dword v{16+r}, v3, s[24:27], s3 offen")
    l += srd(32, 10, 0, E * 2) + srd(44, 12, 0, E * 2) + L(f"""
v_lshlrev_b32 v5, 1, v0
buffer_load_short_d16_hi v6, v5, s[32:35], 0 offen
v_lshlrev_b32 v5, 1, v9
s_lshl_b32 s3, s2, 6
buffer_load_dwordx2 v[12:13], v5, s[44:47], s3 offen
buffer_load_dwordx2 v[14:15], v5, s[44:47], s3 offen offset:16
""") + srd(36, 16, WS_W2F, C * E * 2) + srd(48, 16, WS_BIAS, 768)
    for r in range(1, NREP): l += L(f"v_add_f32 v16, v16, v{16+r}")
    l += L(f"""
v_add_f32 v16, {hx(1e-6)}, v16
v_sqrt_f32 v16, v16
s_nop 1
v_add_f32_dpp v20, v16, v16 quad_perm:[1,0,3,2] row_mask:0xf bank_mask:0xf
v_add_f32_dpp v20, v20, v20 quad_perm:[2,3,0,1] row_mask:0xf bank_mask:0xf
v_add_f32_dpp v20, v20, v20 row_half_mirror row_mask:0xf bank_mask:0xf
v_add_f32_dpp v20, v20, v20 row_ror:8 row_mask:0xf bank_mask:0xf
v_mov_b32 v21, v20
v_permlane16_swap_b32 v20, v21
v_add_f32 v20, v20, v21
v_mov_b32 v21, v20
v_permlane32_swap_b32 v20, v21
v_add_f32 v20, v20, v21
v_lshlrev_b32 v21, 2, v1
ds_write_b32 v21, v20 offset:3072
""")
    for p in range(4):
        l += L(f"v_lshlrev_b32 v{48+2*p}, 16, v{12+p}\nv_and_b32 v{49+2*p}, 0xffff0000, v{12+p}")
    l += L("v_mul_f32 v56, v48, v40")
    for i in range(1, 8): l += L(f"v_fmac_f32 v56, v{48+i}, v{40+i}")
    l += L(f"""
s_waitcnt lgkmcnt(0)
s_barrier
v_mov_b32 v21, 0
ds_read_b128 v[24:27], v21 offset:3072
ds_read_b128 v[28:31], v21 offset:3088
ds_read_b128 v[32:35], v21 offset:3104
v_mov_b32 v57, v56
v_permlane16_swap_b32 v56, v57
v_add_f32 v56, v56, v57
v_mov_b32 v57, v56
v_permlane32_swap_b32 v56, v57
v_add_f32 v56, v56, v57
v_lshrrev_b32 v57, 4, v2
v_lshlrev_b32 v57, 28, v57
v_lshl_add_u32 v57, v7, 2, v57
s_lshl_b32 s3, s23, 1
buffer_atomic_add_f32 v56, v57, s[48:51], s3 offen
""")
    for r in range(25, 36): l += L(f"v_add_f32 v24, v24, v{r}")
    l += L(f"""
v_mul_f32 v24, {hx(1.0/768)}, v24
v_add_f32 v24, {hx(1e-6)}, v24
v_rcp_f32 v24, v24
s_mov_b32 s6, {hx(1.0/KS)}
s_cmp_lt_u32 s2, {NS}
s_cselect_b32 s6, 1.0, s6
v_mul_f32 v16, v16, v24
v_fma_f32 v16, v16, v6, 1.0
v_mul_f32 v16, s6, v16
ds_write_b32 v3, v16
s_waitcnt lgkmcnt(0)
s_barrier
s_lshl_b32 s3, s2, 7
v_lshl_add_u32 v9, v9, 2, s3
ds_read_b128 v[24:27], v9
ds_read_b128 v[28:31], v9 offset:32
s_mul_i32 s7, s21, 72
s_mul_i32 s3, s2, 3
s_add_u32 s7, s7, s3
s_add_u32 s7, s7, s22
s_lshl_b32 s7, s7, 10
v_lshlrev_b32 v3, 4, v2
""")
    for i in range(8): l += L(f"v_mul_f32 v{40+i}, v{40+i}, v{24+i}")
    for p in range(4): l += L(f"v_cvt_pk_bf16_f32 v{32+p}, v{40+2*p}, v{41+2*p}")
    l += L("buffer_store_dwordx4 v[32:35], v3, s[36:39], s7 offen\ns_endpgm")
    P.lin(l); P.finalize(); txt += P.text()
    P = Prog()
    l = L("L2_w1p:") + srd(24, 6, 0, C * E * 2) + L(f"""
s_sub_u32 s3, s2, {24-NS}
s_lshl_b32 s21, s3, 6
s_mul_i32 s22, s20, 24576
s_add_u32 s21, s21, s22
v_and_b32 v3, 31, v2
v_lshrrev_b32 v5, 5, v2
v_mul_u32_u24 v4, 12288, v5
v_lshl_add_u32 v4, v3, 1, v4
""")
    for i in range(8): l += L(f"buffer_load_short_d16_hi v{16+i}, v4, s[24:27], s21 offen\ns_add_u32 s21, s21, 1536")
    l += srd(32, 4, 0, C * 2) + srd(28, 16, WS_W1P, W1P_BYTES) + L(f"""
v_lshlrev_b32 v5, 4, v5
s_lshl_b32 s22, s20, 5
buffer_load_dwordx4 v[12:15], v5, s[32:35], s22 offen
v_add_f32 v6, v16, v17
""")
    for i in range(2, 8): l += L(f"v_add_f32 v6, v6, v{16+i}")
    l += L(f"""
v_mov_b32 v7, v6
v_permlane32_swap_b32 v6, v7
v_add_f32 v6, v6, v7
v_lshlrev_b32 v3, 2, v3
v_lshl_add_u32 v7, v1, 7, v3
ds_write_b32 v7, v6
s_waitcnt lgkmcnt(0)
s_barrier
""")
    for k in range(12): l += L(f"ds_read_b32 v{24+k}, v3 offset:{128*k}")
    for p in range(4): l += L(f"v_lshlrev_b32 v{40+2*p}, 16, v{12+p}\nv_and_b32 v{41+2*p}, 0xffff0000, v{12+p}")
    for i in range(8): l += L(f"v_mul_f32 v{40+i}, {hx(KS)}, v{40+i}")
    for k in range(1, 12): l += L(f"v_add_f32 v24, v24, v{24+k}")
    l += L(f"v_mul_f32 v24, {hx(1.0/192)}, v24")
    for i in range(8): l += L(f"v_sub_f32 v{16+i}, v{16+i}, v24")
    for i in range(8): l += L(f"v_mul_f32 v{16+i}, v{16+i}, v{40+i}")
    for p in range(4): l += L(f"v_cvt_pk_bf16_f32 v{12+p}, v{16+2*p}, v{17+2*p}")
    l += L(f"""
s_sub_u32 s3, s2, 24
s_mul_i32 s3, s3, 12
s_add_u32 s3, s3, s20
s_lshl_b32 s3, s3, 10
v_lshlrev_b32 v3, 4, v2
buffer_store_dwordx4 v[12:15], v3, s[28:31], s3 offen
L2_end:
s_endpgm
""")
    P.lin(l); P.finalize(); txt += P.text()
    return name, txt, descr(name, 64, 64), f"; @launch kernel={name} grid=({24+NR},1,1) block=(768,1,1) lds=3840"
```

```python
from common import *
HS = 0; HRO = 65536; XO = 98304; XH = 6272; XS = 2 * XH; OUTO = XO + 4 * XS; OUTS = 6400; LDS3 = OUTO + 2 * OUTS
ACC2 = 116; ACC1 = (84, 100); BR = 68; XR = 56; HPK = 48; IDM = 36; OT = 28; RHO = (26, 27); Z = 24
A_B0, A_B1, A_XG, A_XI, A_XD, A_HD, A_HW, A_OW, A_OR, A_OG, A_RH, A_TG, A_TI = 1, 2, 3, 7, 10, 13, 14, 15, 16, 18, 20, 21, 22
def w2(j, a):
    f = 3 * j + a
    return ar(4 * f, 4) if f < 64 else vr(128 + 4 * (f - 64), 4)
def w1(c, ks): return vr(160 + 4 * (12 * c + ks), 4)
M16 = "v_mfma_f32_16x16x32_bf16"; M32 = "v_mfma_f32_32x32x16_bf16"
def xread(ks, slot): return f"ds_read_b128 {vr(XR+4*(ks%3),4)}, v{A_XG+(ks&3)} offset:{slot*XS+(ks>>2)*128}"
def g1mf(buf, c, ks):
    a = vr(ACC1[buf], 16)
    return f"{M32} {a}, {w1(c,ks)}, {vr(XR+4*(ks%3),4)}, {'0' if ks == 0 else a}"
def gelu(buf, rho):
    l = []
    for p in range(8):
        a0 = ACC1[buf] + 2 * p; a1 = a0 + 1
        l += [f"v_mul_f32 v{a0}, v{a0}, v{rho}", f"v_mul_f32 v{a1}, v{a1}, v{rho}",
              f"v_fmaak_f32 v{Z}, v{a0}, v{a0}, {hx(C0)}", f"v_fmaak_f32 v{Z+1}, v{a1}, v{a1}, {hx(C0)}",
              f"v_mul_f32 v{Z}, v{Z}, v{a0}", f"v_mul_f32 v{Z+1}, v{Z+1}, v{a1}",
              f"v_exp_f32_e64 v{Z}, -v{Z}", f"v_exp_f32_e64 v{Z+1}, -v{Z+1}",
              f"v_add_f32 v{Z}, 1.0, v{Z}", f"v_add_f32 v{Z+1}, 1.0, v{Z+1}",
              f"v_rcp_f32 v{Z}, v{Z}", f"v_rcp_f32 v{Z+1}, v{Z+1}",
              f"v_mul_f32 v{a0}, v{a0}, v{Z}", f"v_mul_f32 v{a1}, v{a1}, v{Z+1}",
              f"v_cvt_pk_bf16_f32 v{HPK+p}, v{a0}, v{a1}"]
    return l
def hwrite(par, c): return [f"ds_write_b128 v{A_HW}, {vr(HPK+4*s,4)} offset:{par*16384+c*1024+s*512}" for s in range(2)]
def drain(par):
    l = []
    for a in range(3):
        d = ACC2 + 4 * a
        l += [f"v_cvt_pk_bf16_f32 v{OT+2*a}, v{d}, v{d+1}", f"v_cvt_pk_bf16_f32 v{OT+2*a+1}, v{d+2}, v{d+3}", f"ds_write_b64 v{A_OW}, {vr(OT+2*a,2)} offset:{par*OUTS+32*a}"]
    return l
def readback(par, cfg):
    return [f"ds_read_b128 {vr(OT+4*i,4)}, v{A_OR+i} offset:{par*OUTS}" for i in range(2)] + \
           [f"buffer_store_dwordx4 {vr(OT+4*i,4)}, v{A_OG+i}, s[40:43], s46 offen {cfg['oflag']}" for i in range(2)]

def k3(cfg):
    name = "pass2_kernel"
    NG = 87
    mf = []; bud = []; kind = []
    g1pos = {}; idpos = {}; g2pos = {}
    for k in range(4):
        sub = k & 1; tau = k >> 1
        c = 0 if sub else 1
        order = [("m", i) for i in range(8)] + [("i", 0), ("m", 8), ("i", 1), ("m", 9), ("i", 2), ("m", 10), ("m", 11)]
        for t, i in order:
            if t == "m": g1pos[k, i] = len(mf); mf.append(I(g1mf(k % 2, c, i))); bud.append(24)
            else:
                idpos[k, i] = len(mf); mf.append(I(f"{M16} {vr(ACC2+4*i,4)}, {vr(IDM+4*i,4)}, {vr(BR+4*i,4)}, 0")); bud.append(8)
        for j in range(24):
            for a in range(3):
                if a == 0: g2pos[k, j] = len(mf)
                d = vr(ACC2 + 4 * a, 4)
                mf.append(I(f"{M16} {d}, {w2(j,a)}, {vr(BR+4*((j+3)%4),4)}, {d}")); bud.append(8)
    N = len(mf); assert N == 4 * NG
    infl = cfg.get("infl", 3)
    for g in range(N):
        if bud[g] == 8 and infl and g % infl == 1: bud[g] = 12
    G = Gaps(mf, bud); G.drop = cfg.get("drop3", ())
    BARR = NG - 6
    for k in range(4):
        sub = k & 1; tau = k >> 1; b0 = k * NG
        def gslot(kk):
            kk %= 4; tt = (kk >> 1) + (2 if kk & 1 else 1)
            return tt
        def bread(j):
            dst = vr(BR + 4 * ((j + 3) % 4), 4)
            if j < NS: return f"ds_read_b128 {dst}, v{A_B0} offset:{HS+k*16384+j*1024}"
            return f"ds_read_b128 {dst}, v{A_B1} offset:{(tau%2)*16384+sub*8192+(j-NS)*1024}"
        for a in range(3): G.put(b0 + 3 + a, I(f"ds_read_b128 {vr(BR+4*a,4)}, v{A_XI+a} offset:{(tau%2)*XS+sub*XH}"), "rd", b0 + 3 + a)
        G.put(b0 + 6, I(bread(0)), "rd", b0 + 6)
        for j in (1, 2, 3): G.put(idpos[k, j - 1] + 1, I(bread(j)), "rd", idpos[k, j - 1] + 1)
        for j in range(4, 24): G.put(g2pos[k, j - 3], I(bread(j), tag="lastb" if j == 23 else None), "rd", g2pos[k, j - 3])
        for ks in range(3, 12):
            p = g1pos[k, ks - 3]
            G.put(p, I(xread(ks, gslot(k) % 2)), "xr", p)
        if k == 0:
            for r in range(4): G.put(b0 + 60 + 3 * r, I(f"v_add_u32 v{A_XG+r}, s50, v{A_XG+r}"), "xr")
        if k == 3:
            for r in range(3): G.put(b0 + 60 + 3 * r, I(f"v_add_u32 v{A_XI+r}, s50, v{A_XI+r}"), "xr")
        nk = k + 1
        need = ["lastb", "hw", "ow", (f"h{nk%4}", 0)] + ([("x", 3)] if nk & 1 else [])
        G.put(b0 + BARR, I("s_barrier", need=need), "xr", b0 + BARR)
        for ks in range(3): G.put(b0 + BARR + 1 + ks, I(xread(ks, gslot(nk) % 2)), "xr", b0 + BARR + 1 + ks)
        p = b0 + 16
        G.put(p, I(f"s_add_u32 m0, s48, {((k+3)%4)*16384}"), "dma"); p += 2
        for q in range(4):
            G.put(p, I(f"buffer_load_dwordx4 v{A_HD}, s[28:31], s45 offen offset:{1024*q} lds {cfg['hld']}", tag=f"h{(k+3)%4}"), "dma"); p += 6
        G.put(p - 3, I("s_add_u32 s45, s45, 16384"), "dma")
        if sub == 0:
            G.put(p, I("s_mov_b32 m0, s49"), "dma"); p += 2
            for q in range(3):
                G.put(p, I(f"buffer_load_dwordx4 v{A_XD+q}, s[24:27], s44 offen offset:{1024*q} lds {cfg['xflag3']}", tag="x"), "dma"); p += 6
            G.put(p - 3, I("s_add_u32 s44, s44, 12288"), "dma")
            G.put(p, I(f"s_add_u32 s49, s49, {XS}") if tau == 1 else I(f"s_add_u32 s49, s49, s52"), "dma")
        else:
            G.put(p, I(f"buffer_load_dword v{RHO[(tau+1)%2]}, v{A_RH}, s[32:35], s47 offen"), "dma")
            G.put(p + 3, I("s_add_u32 s47, s47, 128"), "dma")
        p = b0 + 1
        for x in drain((k - 1) % 2):
            G.put(p, I(x, tag="ow" if x.startswith("ds_") else None, meta="e" if k == 0 else None), "dr", int(p) + (0 if x.startswith("v_") else 1)); p += 0.7
        rb = readback(k % 2, cfg)
        if k == 2: G.put(b0 + 20, I(f"s_mov_b32 s42, {PXCU*384}"), "rb")
        for x, p in zip(rb, (23, 26, 35, 41)): G.put(b0 + p, I(x, meta="e" if k == 0 else None), "rb")
        G.put(b0 + 47, I("s_add_u32 s46, s46, 6144", meta="e" if k == 0 else None), "rb")
        rho = RHO[gslot(k) % 2]
        ops = gelu(k % 2, rho)
        w0 = b0 + cfg.get("gw0", 20); w1_ = b0 + NG + cfg.get("gw1", 17)
        fixed = lambda g: (4 if (g % NG) >= 15 and ((g % NG) - 15) % 3 == 0 else 0) + (10 if (g % NG) < 9 else 4 if (g % NG) < 14 else 0)
        cap = [bud[g % N] - fixed(g) for g in range(w0, w1_ + 1)]
        tot = sum(cap); cum = 0; costs = [8 if ("exp" in x or "rcp" in x) else 4 for x in ops]; T = sum(costs)
        gi = 0; cc = cap[0]
        for x, cst in zip(ops, costs):
            cum += cst
            while cc * T < cum * tot - 1e-9: gi += 1; cc += cap[gi]
            dl = w0 + gi
            if dl < N: G.put(max(w0, dl - 3), I(x), f"ge{k}", dl, late=True)
            else: G.put(max(0, dl - N - 3), I(x, meta="w"), f"gew", dl - N, late=True)
        par = gslot(k) % 2; c = 0 if sub else 1
        for i, x in enumerate(hwrite(par, c)):
            p = w1_ + 1 + i
            if p < N: G.put(p, I(x, tag="hw"), f"ge{k}", p)
            else: G.put(p - N, I(x, tag="hw", meta="w"), "gew", p - N)
    G.put(N - 5, Grp("s_sub_u32 s50, 0, s50\ns_sub_u32 s52, s53, s52"), "sa")
    G.put(N - 2, I("s_sub_u32 s51, s51, 1"), "sa", N - 2); G.put(N - 1, I("s_cmp_lg_u32 s51, 0"), "sa")
    em = G.emit(report=True)
    body = [x[1] for x in em]
    P = Prog(); P.nohoist32 = cfg.get('nh32', 1)
    l = L(f"""
s_cmp_ge_u32 s2, {NCU}
s_cbranch_scc1 L3_end
s_load_dwordx2 s[8:9], s[0:1], 0
s_load_dwordx2 s[10:11], s[0:1], 48
s_load_dwordx2 s[16:17], s[0:1], 64
v_lshrrev_b32 v23, 6, v0
v_and_b32 v0, 63, v0
v_readfirstlane_b32 s20, v23
""") + code_srd(3) + L(f"""
v_lshlrev_b32 v50, 7, v0
s_lshl_b32 s84, s20, 13
buffer_load_dword v{ACC2}, v50, s[80:83], s84 offen
v_lshlrev_b32 v{A_B0}, 4, v0
s_mul_i32 s3, s2, {PXCU*384}
s_mul_i32 s4, s2, {36*NS*1024}
s_mul_i32 s5, s2, {PXCU*4}
s_add_u32 s5, s5, {WS_RHO}
s_mul_i32 s21, s20, 3072
s_lshr_b32 s22, s20, 1
s_lshl_b32 s22, s22, 7
s_add_u32 s49, s21, s22
s_add_u32 s49, s49, {XO}
s_lshl_b32 s48, s20, 12
""")
    for i in range(3):
        l += L(f"""
v_add_u32 v48, {64*i}, v0
v_mul_u32_u24 v48, 2731, v48
v_lshrrev_b32 v48, 17, v48
v_lshl_add_u32 v48, v23, 2, v48
v_and_b32 v48, 7, v48
v_xor_b32 v48, v48, v0
v_lshl_add_u32 v{A_XD+i}, v48, 4, s21
""")
    assert all(((x * 2731) >> 17) == (x // 24) >> 1 for x in range(192))
    l += L(f"""
s_waitcnt lgkmcnt(0)
s_add_u32 s24, s8, s3
s_addc_u32 s25, s9, 0
s_mov_b32 s26, {PXCU*384}
s_mov_b32 s27, 0x20000
s_mov_b32 s44, 0
s_lshr_b32 s6, s2, 3
s_lshl_b32 s6, s6, 2
s_add_u32 s6, s6, s20
""") + sdiv(7, 6, 48, 128) + srd(36, 16, WS_W2F, C * E * 2 + W1P_BYTES) + L(f"""
s_mul_i32 s7, s7, 48
s_sub_u32 s6, s6, s7
s_lshl_b32 s6, s6, 13
buffer_load_dword v{ACC2+1}, v50, s[36:39], s6 offen
""")
    def xdma(t):
        return L("s_mov_b32 m0, s49") + [I(f"buffer_load_dwordx4 v{A_XD+q}, s[24:27], s44 offen offset:{1024*q} lds {cfg['xflag3']}", tag=f"px{t}" if t < 2 else "x") for q in range(3)] + L(f"s_add_u32 s44, s44, 12288\ns_add_u32 s49, s49, {XS}")
    l += xdma(0) + xdma(1)
    l += srd(36, 16, WS_W1P, W1P_BYTES) + L(f"s_mul_i32 s22, s20, {24*1024}")
    for f in range(24):
        l += L(f"buffer_load_dwordx4 {w1(f//12, f%12)}, v{A_B0}, s[36:39], s22 offen offset:{1024*(f%4)}")
        if f % 4 == 3: l += L("s_add_u32 s22, s22, 4096")
    l += L(f"""
s_add_u32 s32, s16, s5
s_addc_u32 s33, s17, 0
s_mov_b32 s34, {PXCU*4}
s_mov_b32 s35, 0x20000
v_and_b32 v48, 31, v0
v_lshlrev_b32 v{A_RH}, 2, v48
buffer_load_dword v{RHO[0]}, v{A_RH}, s[32:35], 0 offen
buffer_load_dword v{RHO[1]}, v{A_RH}, s[32:35], 0 offen offset:128
s_mov_b32 s47, 384
""") + srd(60, 16, WS_BIAS, 768) + L(f"""
v_and_b32 v49, 15, v0
v_lshlrev_b32 v{OT}, 2, v49
s_mul_i32 s22, s20, 192
buffer_load_dword v{OT+1}, v{OT}, s[60:63], s22 offen
buffer_load_dword v{OT+2}, v{OT}, s[60:63], s22 offen offset:64
buffer_load_dword v{OT+3}, v{OT}, s[60:63], s22 offen offset:128
s_add_u32 s28, s16, s4
s_addc_u32 s29, s17, 0
s_mov_b32 s30, {36*NS*1024}
s_mov_b32 s31, 0x20000
v_add_u32 v{A_HD}, s48, v{A_B0}
s_mov_b32 s45, 0
""")
    hl = []
    for t in range(3):
        hl += L(f"s_add_u32 m0, s48, {t*16384}")
        for q in range(4): hl.append(I(f"buffer_load_dwordx4 v{A_HD}, s[28:31], s45 offen offset:{1024*q} lds {cfg['hld']}", tag=f"h{t}"))
        hl += L("s_add_u32 s45, s45, 16384")
    l += srd(36, 16, WS_W2F, C * E * 2) + L(f"s_mul_i32 s22, s20, {72*1024}")
    wl = []
    for f in range(72):
        wl += L(f"buffer_load_dwordx4 {w2(f//3, f%3)}, v{A_B0}, s[36:39], s22 offen offset:{1024*(f%4)}")
        if f % 4 == 3: wl += L("s_add_u32 s22, s22, 4096")
    n1 = cfg.get('pa', 12)
    l += wl[:n1]
    wl = wl[n1:n1+30] + hl[:6] + wl[n1+30:] + hl[6:12] + xdma(2) + hl[12:]
    l += L(f"""
s_add_u32 s40, s10, s3
s_addc_u32 s41, s11, 0
s_mov_b32 s42, 0
s_mov_b32 s43, 0x20000
s_mov_b32 s46, {-2*6144 & 0xffffffff}
s_mov_b32 s50, {2*XS}
s_mov_b32 s52, {(-3*XS) & 0xffffffff}
s_mov_b32 s53, {(-2*XS) & 0xffffffff}
s_mov_b32 s51, 9
v_add_u32 v{A_B1}, {HRO}, v{A_B0}
v_lshrrev_b32 v{Z}, 5, v0
v_bfe_u32 v{Z+1}, v0, 1, 3
v_xor_b32 v{A_XG}, v{Z}, v{Z+1}
v_lshlrev_b32 v{A_XG}, 4, v{A_XG}
v_mul_u32_u24 v{OT+4}, 384, v48
v_add_u32 v{A_XG}, v{A_XG}, v{OT+4}
v_bfe_u32 v{OT+4}, v0, 4, 1
v_lshl_add_u32 v{A_XG}, v{OT+4}, 7, v{A_XG}
v_add_u32 v{A_XG}, {XO}, v{A_XG}
v_xor_b32 v{A_XG+1}, 32, v{A_XG}
v_xor_b32 v{A_XG+2}, 64, v{A_XG}
v_xor_b32 v{A_XG+3}, 0x60, v{A_XG}
v_lshlrev_b32 v{A_HW}, 13, v{OT+4}
v_lshl_add_u32 v{A_HW}, v{Z}, 8, v{A_HW}
v_lshl_add_u32 v{A_HW}, v49, 4, v{A_HW}
v_lshl_add_u32 v{A_HW}, v23, 11, v{A_HW}
v_add_u32 v{A_HW}, {HRO}, v{A_HW}
v_lshrrev_b32 v{OT+5}, 4, v0
v_mul_u32_u24 v{A_OW}, 400, v49
v_lshl_add_u32 v{A_OW}, v{OT+5}, 3, v{A_OW}
v_mul_u32_u24 v{OT+4}, 96, v23
v_add_u32 v{A_OW}, v{A_OW}, v{OT+4}
v_add_u32 v{A_OW}, {OUTO}, v{A_OW}
""")
    for i in range(2):
        l += L(f"""
v_add_u32 v{OT+4}, {64*i}, v0
v_mul_u32_u24 v{OT+6}, 2731, v{OT+4}
v_lshrrev_b32 v{OT+6}, 16, v{OT+6}
v_lshlrev_b32 v{OT+4}, 4, v{OT+4}
v_lshl_add_u32 v{A_OR+i}, v{OT+6}, 4, v{OT+4}
v_mul_u32_u24 v{OT+6}, 1600, v23
v_add_u32 v{A_OR+i}, v{A_OR+i}, v{OT+6}
v_add_u32 v{A_OR+i}, {OUTO}, v{A_OR+i}
v_mul_u32_u24 v{OT+6}, 1536, v23
v_add_u32 v{A_OG+i}, v{OT+4}, v{OT+6}
""")
    assert all(((x * 2731) >> 16) == x // 24 for x in range(128))
    l += L(f"""
v_lshlrev_b32 v{OT+4}, 30, v{Z}
v_add_u32 v{A_OG+1}, v{A_OG+1}, v{OT+4}
""")
    l += L(".set STAMP0, 0")
    for a in range(3):
        d = IDM + 4 * a; bia = OT + 1 + a
        l += L(f"""
s_mul_i32 s6, s20, 3
s_add_u32 s6, s6, {a}
s_and_b32 s7, s6, 1
s_lshr_b32 s6, s6, 1
s_lshl_b32 s6, s6, 2
v_add_u32 v{OT+4}, s6, v{OT+5}
v_lshrrev_b32 v{OT+6}, 3, v{OT+4}
v_and_b32 v{OT+4}, 7, v{OT+4}
v_xor_b32 v{OT+4}, v{OT+4}, v{Z+1}
v_lshlrev_b32 v{OT+4}, 4, v{OT+4}
v_lshl_add_u32 v{OT+4}, v{OT+6}, 7, v{OT+4}
v_mul_u32_u24 v{OT+6}, 384, v49
v_add_u32 v{OT+4}, v{OT+4}, v{OT+6}
v_mov_b32 v{OT+6}, 6144
v_cmp_eq_u32 vcc, s7, v{Z}
v_cndmask_b32 v{OT+4}, v{OT+6}, v{OT+4}, vcc
v_add_u32 v{A_XI+a}, {XO}, v{OT+4}
v_bfe_u32 v{OT+4}, v0, 4, 1
v_lshrrev_b32 v{OT+6}, 3, v49
v_cmp_eq_u32 s[12:13], v{OT+4}, v{OT+6}
s_and_b64 s[12:13], s[12:13], vcc
v_cmp_eq_u32 s[14:15], 0, v{OT+4}
s_andn2_b64 s[14:15], s[14:15], vcc
v_and_b32 v{OT+4}, 1, v0
v_lshlrev_b32 v{OT+4}, 4, v{OT+4}
v_mov_b32 v{OT+6}, 0x3f80
v_lshlrev_b32 v{OT+4}, v{OT+4}, v{OT+6}
v_cndmask_b32 v{OT+4}, 0, v{OT+4}, s[12:13]
v_bfe_u32 v{OT+6}, v0, 1, 2
""")
        for r in range(4): l += L(f"v_cmp_eq_u32 vcc, {r}, v{OT+6}\nv_cndmask_b32 v{d+r}, 0, v{OT+4}, vcc")
        l += L(f"""
v_and_b32 v{OT+4}, 0xffff0000, v{bia}
v_sub_f32 v{bia}, v{bia}, v{OT+4}
v_and_b32 v{OT+6}, 0xffff0000, v{bia}
v_sub_f32 v{bia}, v{bia}, v{OT+6}
v_lshrrev_b32 v{OT+4}, 16, v{OT+4}
v_or_b32 v{OT+4}, v{OT+4}, v{OT+6}
v_lshrrev_b32 v{bia}, 16, v{bia}
v_cndmask_b32 v{d}, v{d}, v{OT+4}, s[14:15]
v_cndmask_b32 v{d+1}, v{d+1}, v{bia}, s[14:15]
""")
    l += L(f"""
v_mov_b32 v{BR}, 0x3f803f80
v_mov_b32 v{BR+1}, 0x3f80
v_mov_b32 v{BR+2}, 0
v_mov_b32 v{BR+3}, 0
v_and_b32 v{OT+4}, 7, v0
v_mul_u32_u24 v{OT+4}, {XH}, v{OT+4}
ds_write_b128 v{OT+4}, {vr(BR,4)} offset:0
""")
    l[-1] = I(f"ds_write_b128 v{OT+4}, {vr(BR,4)} offset:0", tag="hw")
    l.insert(len(l) - 1, I(f"v_add_u32 v{OT+4}, {XO+6144}, v{OT+4}"))
    for r in range(ACC2, ACC2 + 12): l += L(f"v_mov_b32 v{r}, 0")
    l.append(I("s_barrier", need=["px0", "px1", "hw"]))
    l += L(".set STAMP1, 0")

    wrapped = [x.text for x in body if x.meta == "w"]
    def take(n):
        t = []
        while wl and n > 0:
            x = wl.pop(0); t.append(x)
            if x.kind == "vm": n -= 1
        while wl and wl[0].kind == "salu" and "m0" not in wl[0].text: t.append(wl.pop(0))
        return t
    for (tile, c, buf) in ((0, 0, 1), (0, 1, 0), (1, 0, 1)):
        if tile == 1: l += L(f"buffer_load_dword v{RHO[0]}, v{A_RH}, s[32:35], 0 offen offset:256")
        for ks in range(3): l += L(xread(ks, tile))
        for ks in range(12):
            l += L(g1mf(buf, c, ks))
            if ks + 3 < 12: l += L(xread(ks + 3, tile))
            l += take(1)
        if (tile, c) == (0, 0): l += L(".set STAMP2, 0")
        ops = gelu(buf, RHO[tile]) + hwrite(tile, c)
        if tile == 1: ops = ops[:len(ops) - len(wrapped)]; assert (gelu(1, RHO[1]) + hwrite(1, 0))[len(ops):] == wrapped
        for q, x in enumerate(ops):
            l.append(I(x, tag="hw" if x.startswith("ds_") else None))
            if q % cfg.get("pv", 6) == 0: l += take(1)
    l += take(999)
    l += L(".set STAMP3, 0")
    l += L(f"s_waitcnt vmcnt({cfg.get('pw', 11)}) lgkmcnt(0)\ns_barrier")
    for ks in range(3): l += L(xread(ks, 1))
    P.lin(l)
    P.loop(L(".p2align 6\nL3_loop:") + body + L("s_cbranch_scc1 L3_loop"), 9)
    e = [I(x.text, tag=x.tag) for x in body if x.meta == "e"]
    e.append(I("s_barrier", need=["ow"]))
    e += [I(x) for x in readback(1, cfg)]
    P.lin(e + L("L3_end:\ns_endpgm"))
    n = P.finalize(cfg.get("verbose"))
    print("  k3 nops:", n)
    return name, header(name) + P.text(), descr(name, 512, 256), f"; @launch kernel={name} grid=({NCU},1,1) block=(256,1,1) lds={LDS3}"
```

```python
import sys, json
from common import *
from k1 import k1
from k2 import k2
from k3 import k3
DEF = dict(xflag="nt", hflag="sc1", hld="", xflag3="nt", oflag="")
WS_STAMP = 0x0F800000
def stamp(k, idx):
    name, txt, d, ln = k
    txt = txt.replace(f"{name}:\n", f"{name}:\n    s_memrealtime s[90:91]\n    s_memtime s[86:87]\n", 1)
    end = f"""    s_waitcnt vmcnt(0) lgkmcnt(0)
    s_memrealtime s[92:93]
    s_memtime s[88:89]
    s_load_dwordx2 s[64:65], s[0:1], 64
    s_waitcnt lgkmcnt(0)
    s_add_u32 s64, s64, {WS_STAMP + idx * 0x10000}
    s_addc_u32 s65, s65, 0
    s_mov_b32 s66, 0x10000
    s_mov_b32 s67, 0x20000
    s_lshl_b32 s68, s2, 4
    s_sub_u32 s88, s88, s86
    v_mov_b32 v8, s90
    v_mov_b32 v9, s92
    v_mov_b32 v10, s88
    v_mov_b32 v11, s94
    v_mov_b32 v12, s68
    buffer_store_dwordx4 v[8:11], v12, s[64:67], 0 offen
    s_nop 1
    v_mov_b32 v8, s70
    v_mov_b32 v9, s72
    v_mov_b32 v10, s74
    v_mov_b32 v11, s76
    v_add_u32 v12, 0x8000, v12
    buffer_store_dwordx4 v[8:11], v12, s[64:67], 0 offen
    s_endpgm
"""
    txt = txt.replace("    s_endpgm\n", end)
    txt = txt.replace(".p2align 6\nL", "; STAMPMID\n.p2align 6\nL")
    txt = txt.replace("; STAMPMID", "    s_memrealtime s[94:95]\n    s_waitcnt lgkmcnt(0)")
    for n in range(4): txt = txt.replace(f".set STAMP{n}, 0", f"    s_waitcnt lgkmcnt(0)\n    s_memrealtime s[{70+2*n}:{71+2*n}]\n    s_waitcnt lgkmcnt(0)")
    return name, txt, d, ln
def build(cfg=None, path=None, only=None):
    c = dict(DEF); c.update(cfg or {})
    ks = [k1(c), k2(), k3(c)]
    if c.get("stamp"):
        ks = [stamp(k, i) for i, k in enumerate(ks)]
    ref = open(f"cdna_kernels/{NAME}.s.ref").read().splitlines()
    head = [x for x in ref[:10]]
    txt = "\n".join(head) + "\n; Three launches: pass 1 (LN, GEMM1, GELU, GRN sums), GRN scale folding, pass 2 (GEMM2 + residual).\n"
    txt += "\n".join(k[3] for i, k in enumerate(ks) if only is None or i in only) + "\n"
    txt += '.amdgcn_target "amdgcn-amd-amdhsa--gfx950"\n.text\n' + "".join(k[1] for k in ks) + "L_code_end:\n"
    txt += '.section .rodata,"a"\n' + "".join(k[2] for k in ks)
    txt = "\n".join(x for x in txt.splitlines() if not x.startswith(".set STAMP")) + "\n"
    txt = txt.replace(" lds nt", " nt lds").replace(" lds sc1", " sc1 lds")
    txt = "\n".join(x.rstrip() for x in txt.splitlines()) + "\n"
    open(path or f"cdna_kernels/{NAME}.s", "w").write(txt)
    return txt
if __name__ == "__main__":
    cfg = json.loads(sys.argv[1]) if len(sys.argv) > 1 else {}
    build(cfg, sys.argv[2] if len(sys.argv) > 2 else None)
```

```python
import sys, json
from common import *
from k1 import k1
from k2 import k2
from k3 import k3
DEF = dict(xflag="nt", hflag="sc1", hld="", xflag3="nt", oflag="")
WS_STAMP = 0x0F800000
def stamp(k, idx):
    name, txt, d, ln = k
    txt = txt.replace(f"{name}:\n", f"{name}:\n    s_memrealtime s[90:91]\n    s_memtime s[86:87]\n", 1)
    end = f"""    s_waitcnt vmcnt(0) lgkmcnt(0)
    s_memrealtime s[92:93]
    s_memtime s[88:89]
    s_load_dwordx2 s[64:65], s[0:1], 64
    s_waitcnt lgkmcnt(0)
    s_add_u32 s64, s64, {WS_STAMP + idx * 0x10000}
    s_addc_u32 s65, s65, 0
    s_mov_b32 s66, 0x10000
    s_mov_b32 s67, 0x20000
    s_lshl_b32 s68, s2, 4
    s_sub_u32 s88, s88, s86
    v_mov_b32 v8, s90
    v_mov_b32 v9, s92
    v_mov_b32 v10, s88
    v_mov_b32 v11, s94
    v_mov_b32 v12, s68
    buffer_store_dwordx4 v[8:11], v12, s[64:67], 0 offen
    s_nop 1
    v_mov_b32 v8, s70
    v_mov_b32 v9, s72
    v_mov_b32 v10, s74
    v_mov_b32 v11, s76
    v_add_u32 v12, 0x8000, v12
    buffer_store_dwordx4 v[8:11], v12, s[64:67], 0 offen
    s_endpgm
"""
    if idx == 2:
        end = end.replace("    s_endpgm\n", f"""    s_cmp_lg_u32 s2, 0
    s_cbranch_scc1 L_dbgdone
    s_load_dwordx4 s[68:71], s[0:1], 56
    s_waitcnt lgkmcnt(0)
    s_add_u32 s64, s70, {WS_STAMP}
    s_addc_u32 s65, s71, 0
    s_mov_b32 s66, 0x40000
    s_mov_b32 s70, 256
    s_mov_b32 s71, 0x20000
    v_mov_b32 v12, 0
    v_mov_b32 v13, 0x10000
    buffer_load_dwordx4 v[16:19], v12, s[64:67], 0 offen
    buffer_load_dwordx4 v[20:23], v13, s[64:67], 0 offen
    s_waitcnt vmcnt(0)
    v_sub_u32 v17, v17, v16
    v_sub_u32 v19, v19, v16
    v_sub_u32 v20, v20, v16
    v_sub_u32 v21, v21, v16
    v_sub_u32 v24, s90, v16
    v_sub_u32 v25, s92, v16
    v_mov_b32 v26, s88
    v_sub_u32 v27, s94, v16
    buffer_store_dwordx4 v[16:19], v12, s[68:71], 0 offen
    buffer_store_dwordx4 v[20:23], v12, s[68:71], 0 offen offset:16
    buffer_store_dwordx4 v[24:27], v12, s[68:71], 0 offen offset:32
L_dbgdone:
    s_endpgm
""")
    txt = txt.replace("    s_endpgm\n", end)
    txt = txt.replace(".p2align 6\nL", "; STAMPMID\n.p2align 6\nL")
    txt = txt.replace("; STAMPMID", "    s_memrealtime s[94:95]\n    s_waitcnt lgkmcnt(0)")
    for n in range(4): txt = txt.replace(f".set STAMP{n}, 0", f"    s_waitcnt lgkmcnt(0)\n    s_memrealtime s[{70+2*n}:{71+2*n}]\n    s_waitcnt lgkmcnt(0)")
    return name, txt, d, ln
def build(cfg=None, path=None, only=None):
    c = dict(DEF); c.update(cfg or {})
    ks = [k1(c), k2(), k3(c)]
    if c.get("stamp"):
        ks = [stamp(k, i) for i, k in enumerate(ks)]
    ref = open(f"cdna_kernels/{NAME}.s.ref").read().splitlines()
    head = [x for x in ref[:10]]
    txt = "\n".join(head) + "\n; Three launches: pass 1 (LN, GEMM1, GELU, GRN sums), GRN scale folding, pass 2 (GEMM2 + residual).\n"
    txt += "\n".join(k[3] for i, k in enumerate(ks) if only is None or i in only) + "\n"
    txt += '.amdgcn_target "amdgcn-amd-amdhsa--gfx950"\n.text\n' + "".join(k[1] for k in ks) + "L_code_end:\n"
    txt += '.section .rodata,"a"\n' + "".join(k[2] for k in ks)
    txt = "\n".join(x for x in txt.splitlines() if not x.startswith(".set STAMP")) + "\n"
    txt = txt.replace(" lds nt", " nt lds").replace(" lds sc1", " sc1 lds")
    txt = "\n".join(x.rstrip() for x in txt.splitlines()) + "\n"
    open(path or f"cdna_kernels/{NAME}.s", "w").write(txt)
    return txt
if __name__ == "__main__":
    cfg = json.loads(sys.argv[1]) if len(sys.argv) > 1 else {}
    build(cfg, sys.argv[2] if len(sys.argv) > 2 else None)
```

```python
from mbl import *
from mbl import _check, _hip
name = "mb_kernel"
body = """
    s_load_dwordx2 s[4:5], s[0:1], 0
    s_waitcnt lgkmcnt(0)
    s_mov_b32 s8, s4
    s_mov_b32 s9, s5
    s_mov_b32 s10, 0x100000
    s_mov_b32 s11, 0x20000
""" + "".join(f"    v_mov_b32 v{i}, {i}\n    v_accvgpr_write_b32 a{i}, v{i}\n   v_add_u32 v{i}, 1000, v{i}\n" for i in range(8, 256)) + """
    v_mov_b32 v2, 0x40e00000
    s_mov_b32 s0, 20
    s_set_gpr_idx_on s0, gpr_idx(SRC0)
    v_mov_b32 v3, v250
    s_set_gpr_idx_off
    s_mov_b32 s0, 255
    s_set_gpr_idx_on s0, gpr_idx(SRC0)
    v_mov_b32 v4, v250
    s_set_gpr_idx_off
    s_mov_b32 s0, 30
    s_set_gpr_idx_on s0, gpr_idx(DST)
    v_cvt_pk_bf16_f32 v250, v2, v2
    s_set_gpr_idx_off
    s_nop 2
    v_accvgpr_read_b32 v5, a24
    v_mov_b32 v32, 0x3f803f80
    v_mov_b32 v33, 0x3f803f80
    v_mov_b32 v34, 0x3f803f80
    v_mov_b32 v35, 0x3f803f80
    v_mov_b32 v40, 0x3f803f80
    v_mov_b32 v41, 0x3f803f80
    v_mov_b32 v42, 0x3f803f80
    v_mov_b32 v43, 0x3f803f80
    v_mov_b32 v44, 0x40004000
    v_mov_b32 v45, 0x40004000
    v_mov_b32 v46, 0x40004000
    v_mov_b32 v47, 0x40004000
    s_mov_b32 s0, 4
    s_set_gpr_idx_on s0, gpr_idx(SRC1)
    s_nop 2
    v_mfma_f32_16x16x32_bf16 v[48:51], v[32:35], v[40:43], 0
    s_set_gpr_idx_off
    s_nop 15
    v_lshlrev_b32 v1, 6, v0
    buffer_store_dword v3, v1, s[8:11], 0 offen
    buffer_store_dword v4, v1, s[8:11], 0 offen offset:4
    buffer_store_dword v5, v1, s[8:11], 0 offen offset:8
    buffer_store_dword v48, v1, s[8:11], 0 offen offset:12
    buffer_store_dword v250, v1, s[8:11], 0 offen offset:16
    buffer_store_dword v24, v1, s[8:11], 0 offen offset:20
    s_waitcnt vmcnt(0)
"""
asm = HDR.format(g=1, b=64, lds=0, name=name) + body + FTR.format(name=name, nv=512, acc=256)
co = build(asm, name, 9)
if os.path.exists("/dev/kfd"):
    out = DeviceBuffer(0x100000)
    k = AsmKernel(co, name)
    k.launch((1,1,1), (64,1,1), pack_ptr_kernargs([out.ptr]*9)); sync()
    a = out.to_numpy(np.uint32, (64, 16))
    print("v250+20 (a14=14?):", a[0,0], " v250+255 (a249?):", a[0,1], " a24 after cvt (0x40e040e0?):", hex(a[0,2]), " mfma (32.0=0x42000000 noidx / 64.0=0x42800000 idx):", hex(a[0,3]), "v250", a[0,4], "v24", hex(a[0,5]))
```
